```python
import torch

def _softmax(x, axis=-1):
    return torch.softmax(x, dim=axis)
def _gelu(x):
    return torch.nn.functional.gelu(x, approximate="tanh")
def _silu(x):
    return torch.nn.functional.silu(x)
def _sigmoid(x):
    return torch.sigmoid(x)
def _layernorm(x, axis=-1, eps=1e-5):
    m = x.mean(dim=axis, keepdim=True)
    v = x.var(dim=axis, keepdim=True, unbiased=False)
    return (x - m) / torch.sqrt(v + eps)
def _scatter_add(tgt, idx, src, axis=0):
    return tgt.clone().index_add_(axis, idx, src)
def _segment_sum(src, seg, n):
    out = torch.zeros((n,) + src.shape[1:], dtype=src.dtype)
    return out.index_add_(0, seg, src)
def _pad(x, pw):
    flat = tuple(v for pair in reversed(pw) for v in pair)
    return torch.nn.functional.pad(x, flat)

kernel_name = 'standalone__mpnn_edge_mlp__graph'

def setup_inputs():

    _w = (lambda a: (lambda t: t.to(torch.bfloat16) if t.is_floating_point() else t)(torch.as_tensor(a)))
    N, deg, D, De = 12500, 64, 64, max(4, 1)
    E = N * deg
    return {
        "x": _w((lambda *s: torch.randn(*s, dtype=torch.bfloat16) * 0.05)(N, D)),
        "e_attr": _w((lambda *s: torch.randn(*s, dtype=torch.bfloat16) * 0.4)(E, De)),
        "src": _w((lambda lo, hi, *s: torch.randint(lo, hi, s))(0, N, E).to(torch.int64)),
        "dst": _w((lambda lo, hi, *s: torch.randint(lo, hi, s))(0, N, E).to(torch.int64)),
        "w_msg": _w((lambda *s: torch.randn(*s, dtype=torch.bfloat16) * 0.4)(2 * D + De, D)),
        "w_upd": _w((lambda *s: torch.randn(*s, dtype=torch.bfloat16) * 0.05)(2 * D, D)),
    }

def reference(x, e_attr, src, dst, w_msg, w_upd):
    N, D = x.shape
    m_in = torch.concatenate([x[src], x[dst], e_attr], axis=-1)
    msg = _silu(m_in @ w_msg)
    agg = _segment_sum(msg, dst, N)
    return _silu(torch.concatenate([x, agg], axis=-1) @ w_upd)
```

```python
import struct
import sys

OPT = dict(stamp=0)
for a in sys.argv[2:]:
    k, v = a.split("=")
    OPT[k] = int(v)

N, E = 12500, 800000
NB, NPB, CH = 256, 49, 3136
MAGIC, MSHIFT = 21400, 20

WS_TAB = 0
WS_AT = 1 << 19
AT_BYTES = NB * NPB * 128
WS_REC = 4 << 20
RECB = CH * 12
WS_END = WS_REC + NB * RECB
WS_STAMP = 32 << 20


def f32(x):
    return "0x%08x" % struct.unpack("<I", struct.pack("<f", x))[0]


NLOG2E = f32(-1.4426950408889634)
NLN2 = f32(-0.6931471805599453)


class Asm:
    def __init__(self):
        self.l = []

    def __call__(self, s):
        for x in s.strip("\n").split("\n"):
            x = x.strip()
            if x:
                self.l.append(x if x.endswith(":") else "    " + x)

    def text(self):
        return "\n".join(self.l) + "\n"


def vr(a, n):
    return f"v[{a}:{a+n-1}]"


def sr(a, n):
    return f"s[{a}:{a+n-1}]"


def dpp_scan(o, v):
    for m in ("row_shr:1 row_mask:0xf", "row_shr:2 row_mask:0xf", "row_shr:4 row_mask:0xf",
              "row_shr:8 row_mask:0xf", "row_bcast:15 row_mask:0xa", "row_bcast:31 row_mask:0xc"):
        o(f"s_nop 1\nv_add_u32_dpp v{v}, v{v}, v{v} {m} bank_mask:0xf")


def mfma32(d, a, b, c=None):
    cs = vr(d, 16) if c is None else c
    return f"v_mfma_f32_32x32x16_bf16 {vr(d,16)}, {vr(a,4)}, {vr(b,4)}, {cs}"


def mfma16(d, a, b, c=None):
    cs = vr(d, 4) if c is None else c
    return f"v_mfma_f32_16x16x32_bf16 {vr(d,4)}, {vr(a,4)}, {vr(b,4)}, {cs}"


class Stamp:
    def __init__(self, o, sbase, kern):
        self.o, self.sb, self.n, self.kern = o, sbase, 0, kern

    def __call__(self):
        if OPT["stamp"]:
            self.o(f"s_memrealtime {sr(self.sb + 2 * self.n, 2)}")
            self.n += 1

    def flush(self, srd, swave, vt):
        if not OPT["stamp"]:
            return
        o = self.o
        o(f"""s_waitcnt lgkmcnt(0)
        s_mov_b64 exec, -1
        s_lshl_b32 s3, s2, 4
        s_add_u32 s3, s3, s{swave}
        s_lshl_b32 s3, s3, 6
        s_add_u32 s3, s3, {WS_STAMP + self.kern * (1 << 20)}
        s_mov_b32 s{srd+2}, {WS_STAMP + (4 << 20)}
        v_mov_b32 v{vt}, s3""")
        for i in range(self.n):
            o(f"v_mov_b32 v{vt+1}, s{self.sb + 2 * i}\nbuffer_store_dword v{vt+1}, v{vt}, {sr(srd,4)}, 0 offen offset:{4*i}")


def xw_issue(o, vW, vX, vlane, vt, srdW, woff, srdX, sXoff, srt):
    o(f"v_lshlrev_b32 v{vt}, 4, v{vlane}")
    o(f"s_mov_b32 s4, {woff}\ns_mov_b32 s5, {woff + 4096}")
    for i in range(8):
        o(f"buffer_load_dwordx4 {vr(vW+4*i,4)}, v{vt}, {sr(srdW,4)}, s{4 + i // 4} offen offset:{(i % 4) * 1024}")
    o(f"""v_and_b32 v{vt}, 31, v{vlane}
    v_lshlrev_b32 v{vt}, 7, v{vt}
    v_lshrrev_b32 v{vt+1}, 5, v{vlane}
    v_lshl_add_u32 v{vt}, v{vt+1}, 4, v{vt}
    s_lshl_b32 s4, s{srt}, 12
    s_add_u32 s4, s4, s{sXoff}""")
    for s in range(4):
        o(f"buffer_load_dwordx4 {vr(vX+4*s,4)}, v{vt}, {sr(srdX,4)}, s4 offen offset:{32*s}")


def xw_compute(o, vW, vX, vAcc, vlane, vt, sLds, sSelE, sSelO):
    o(f"""v_lshrrev_b32 v{vt}, 3, v{vlane}
    v_lshlrev_b32 v{vt}, 7, v{vt}
    v_and_b32 v{vt+1}, 7, v{vlane}
    v_lshl_add_u32 v{vt}, v{vt+1}, 3, v{vt}
    v_add_u32 v{vt}, s{sLds}, v{vt}""")
    for i in range(8):
        w = vW + 4 * i
        p = vAcc + 4 * i
        o(f"""v_perm_b32 v{p}, v{w+1}, v{w}, s{sSelE}
        v_perm_b32 v{p+1}, v{w+3}, v{w+2}, s{sSelE}
        v_perm_b32 v{p+2}, v{w+1}, v{w}, s{sSelO}
        v_perm_b32 v{p+3}, v{w+3}, v{w+2}, s{sSelO}
        ds_write_b64 v{vt}, {vr(p,2)} offset:{i*1024}
        ds_write_b64 v{vt}, {vr(p+2,2)} offset:{i*1024+64}""")
    o(f"""v_lshrrev_b32 v{vt}, 5, v{vlane}
    v_lshlrev_b32 v{vt}, 10, v{vt}
    v_bfe_u32 v{vt+1}, v{vlane}, 2, 2
    v_lshl_add_u32 v{vt}, v{vt+1}, 7, v{vt}
    v_bfe_u32 v{vt+1}, v{vlane}, 4, 1
    v_lshl_add_u32 v{vt}, v{vt+1}, 5, v{vt}
    v_and_b32 v{vt+1}, 3, v{vlane}
    v_lshl_add_u32 v{vt}, v{vt+1}, 3, v{vt}
    v_add_u32 v{vt}, s{sLds}, v{vt}
    s_waitcnt lgkmcnt(0)""")
    for t in range(2):
        for s in range(4):
            for u in range(2):
                o(f"ds_read_b64_tr_b16 {vr(vW + 16*t + 4*s + 2*u, 2)}, v{vt} offset:{s*2048 + u*512 + t*64}")
        if t == 0:
            o("s_waitcnt lgkmcnt(0)")
    o("s_waitcnt lgkmcnt(0)")
    for t in range(2):
        for s in range(4):
            o(mfma32(vAcc + 16 * t, vX + 4 * s, vW + 16 * t + 4 * s, "0" if s == 0 else None))
    o(f"s_mov_b32 s4, {NLOG2E}\ns_nop 12")
    for q in range(32):
        o(f"v_mul_f32 v{vAcc+q}, s4, v{vAcc+q}")


def row_of(q):
    return (q & 3) + 8 * (q >> 2)


def gen_k1():
    o = Asm()
    L_HIST, L_OFFS, L_SORT, L_EA, L_W = 0, 1024, 2048, 16384, 49152
    lds = L_W + 2 * 8192
    DST, SRC, EAS, WS, XS, WM, ATS = 16, 20, 24, 28, 36, 40, 44
    sWave, sO4, sO8, sNP, sM49, sRec, sTab, sXo, sRt, sLw, sSelE, sSelO = 6, 7, 8, 9, 10, 11, 12, 13, 14, 15, 48, 49
    M0_, M1_ = 32, 34
    st = Stamp(o, 52, 0)
    o("s_cmp_ge_u32 s2, 256\ns_cbranch_scc1 L1_end")
    st()
    o(f"""s_load_dwordx2 {sr(DST,2)}, s[0:1], 24
    s_load_dwordx2 {sr(SRC,2)}, s[0:1], 16
    s_load_dwordx2 {sr(EAS,2)}, s[0:1], 8
    s_load_dwordx2 {sr(WS,2)}, s[0:1], 64
    s_load_dwordx2 {sr(ATS,2)}, s[0:1], 64
    s_load_dwordx2 {sr(XS,2)}, s[0:1], 0
    s_load_dwordx2 {sr(WM,2)}, s[0:1], 32
    v_lshrrev_b32 v1, 6, v0
    v_and_b32 v2, 63, v0
    v_readfirstlane_b32 s{sWave}, v1
    v_lshlrev_b32 v3, 2, v0
    v_mov_b32 v4, 0
    ds_write_b32 v3, v4
    s_mov_b32 s{DST+2}, {E*4}
    s_mov_b32 s{DST+3}, 0x20000
    s_mov_b32 s{SRC+2}, {E*4}
    s_mov_b32 s{SRC+3}, 0x20000
    s_mov_b32 s{EAS+2}, {E*8}
    s_mov_b32 s{EAS+3}, 0x20000
    s_mov_b32 s{WS+2}, {WS_END}
    s_mov_b32 s{WS+3}, 0x20000
    s_mov_b32 s{XS+2}, {N*128}
    s_mov_b32 s{XS+3}, 0x20000
    s_mov_b32 s{WM+2}, {132*128}
    s_mov_b32 s{WM+3}, 0x20000
    s_mov_b32 s{ATS+3}, 0x20000
    s_mul_i32 s{sXo}, s2, {NPB*128}
    s_add_u32 s{ATS+2}, s{sXo}, {WS_AT + NPB*128}
    s_mul_i32 s{sRec}, s2, {RECB}
    s_add_u32 s{sRec}, s{sRec}, {WS_REC}
    s_cmp_ge_u32 s{sWave}, 13
    s_cbranch_scc1 L1_tab""")
    vD, vS, vA, vR, vW_, vP, vOne = 8, 12, 16, 20, 24, 5, 28
    o(f"""s_mul_i32 s{sO4}, s2, {CH*4}
    s_lshl_b32 s{sO8}, s{sO4}, 1
    s_mul_i32 s4, s2, {CH//2}
    s_sub_u32 s{sNP}, {E//2}, s4
    s_min_u32 s{sNP}, s{sNP}, {CH//2}
    v_lshl_add_u32 v{vP}, v1, 7, v2
    v_add_u32 v6, 64, v{vP}
    v_cmp_gt_u32 {sr(M0_,2)}, s{sNP}, v{vP}
    v_cmp_gt_u32 {sr(M1_,2)}, s{sNP}, v6
    v_lshlrev_b32 v6, 3, v{vP}
    v_lshlrev_b32 v7, 4, v{vP}
    s_lshl_b32 s4, s{sWave}, 11
    s_add_u32 m0, s4, {L_EA}
    s_movk_i32 s{sM49}, -{NPB}
    v_mov_b32 v{vOne}, 1
    s_waitcnt lgkmcnt(0)
    s_mov_b64 exec, {sr(M0_,2)}
    buffer_load_dwordx2 {vr(vD,2)}, v6, {sr(DST,4)}, s{sO4} offen
    s_mov_b64 exec, {sr(M1_,2)}
    buffer_load_dwordx2 {vr(vD+2,2)}, v6, {sr(DST,4)}, s{sO4} offen offset:512
    buffer_load_dwordx2 {vr(vS+2,2)}, v6, {sr(SRC,4)}, s{sO4} offen offset:512
    s_mov_b64 exec, {sr(M0_,2)}
    buffer_load_dwordx2 {vr(vS,2)}, v6, {sr(SRC,4)}, s{sO4} offen
    buffer_load_dwordx4 v7, {sr(EAS,4)}, s{sO8} offen lds
    s_mov_b64 exec, {sr(M1_,2)}
    buffer_load_dwordx4 v7, {sr(EAS,4)}, s{sO8} offen offset:1024 lds
    s_mov_b64 exec, -1
    s_barrier
    s_waitcnt vmcnt(4)""")
    st()
    for i in range(4):
        o(f"""v_mul_u32_u24 v{vA+i}, {MAGIC}, v{vD+i}
        v_lshrrev_b32 v{vA+i}, {MSHIFT}, v{vA+i}
        v_mad_i32_i24 v{vD+i}, v{vA+i}, s{sM49}, v{vD+i}
        v_lshlrev_b32 v{vA+i}, 2, v{vA+i}""")
    o(f"""s_mov_b64 exec, {sr(M0_,2)}
    ds_add_rtn_u32 v{vR}, v{vA}, v{vOne}
    ds_add_rtn_u32 v{vR+1}, v{vA+1}, v{vOne}
    s_mov_b64 exec, {sr(M1_,2)}
    ds_add_rtn_u32 v{vR+2}, v{vA+2}, v{vOne}
    ds_add_rtn_u32 v{vR+3}, v{vA+3}, v{vOne}
    s_mov_b64 exec, -1
    v_lshlrev_b32 v6, 21, v{vP}
    v_lshlrev_b32 v7, 4, v2""")
    for i in range(4):
        idc = ((i & 1) + 128 * (i >> 1)) << 20
        o(f"v_lshl_add_u32 v{vW_+i}, v{vD+i}, 14, v6")
        if idc:
            o(f"v_add_u32 v{vW_+i}, {hex(idc)}, v{vW_+i}")
    o(f"""s_waitcnt lgkmcnt(0)
    s_barrier""")
    st()
    vC, vO = 32, 36
    o(f"""ds_read_b128 {vr(vC,4)}, v7
    s_waitcnt lgkmcnt(0)
    v_add_u32 v{vO+2}, v{vC}, v{vC+1}
    v_add_u32 v{vO+3}, v{vO+2}, v{vC+2}
    v_add_u32 v30, v{vO+3}, v{vC+3}
    v_mov_b32 v31, v30""")
    dpp_scan(o, 31)
    o(f"""v_sub_u32 v{vO}, v31, v30
    v_add_u32 v{vO+1}, v{vO}, v{vC}
    v_add_u32 v{vO+2}, v{vO}, v{vO+2}
    v_add_u32 v{vO+3}, v{vO}, v{vO+3}
    ds_write_b128 v7, {vr(vO,4)} offset:{L_OFFS}
    s_waitcnt lgkmcnt(0)""")
    for i in range(4):
        o(f"ds_read_b32 v{vA+i}, v{vA+i} offset:{L_OFFS}")
    o(f"""s_cmp_lg_u32 s{sWave}, 0
    s_cbranch_scc1 L1_notab
    s_lshl_b32 s{sTab}, s2, 10""")
    for i in range(4):
        o(f"v_lshl_or_b32 v{vC+i}, v{vC+i}, 16, v{vO+i}")
    o(f"""buffer_store_dwordx4 {vr(vC,4)}, v7, {sr(WS,4)}, s{sTab} offen
    s_waitcnt vmcnt(3)
    s_branch L1_tabdone
    L1_notab:
    s_waitcnt vmcnt(2)
    L1_tabdone:""")
    for i in range(4):
        o(f"v_or_b32 v{vW_+i}, v{vW_+i}, v{vS+i}")
    o("s_waitcnt lgkmcnt(0)")
    for i in range(4):
        o(f"v_add_lshl_u32 v{vA+i}, v{vA+i}, v{vR+i}, 2")
    o(f"""s_mov_b64 exec, {sr(M0_,2)}
    ds_write_b32 v{vA}, v{vW_} offset:{L_SORT}
    ds_write_b32 v{vA+1}, v{vW_+1} offset:{L_SORT}
    s_mov_b64 exec, {sr(M1_,2)}
    ds_write_b32 v{vA+2}, v{vW_+2} offset:{L_SORT}
    ds_write_b32 v{vA+3}, v{vW_+3} offset:{L_SORT}
    s_mov_b64 exec, -1""")
    st()
    o("s_waitcnt vmcnt(0) lgkmcnt(0)")
    o("L1_out:\ns_barrier")
    st()
    o(f"""ds_read_b32 v10, v3 offset:{L_SORT}
    ds_read_b32 v14, v3 offset:{L_SORT+4096}
    ds_read_b32 v18, v3 offset:{L_SORT+8192}
    v_mul_u32_u24 v5, 12, v0
    s_add_u32 s4, s{sRec}, 12288
    s_add_u32 s5, s{sRec}, 24576""")
    for k in range(3):
        o(f"""s_waitcnt lgkmcnt(2)
        v_lshrrev_b32 v6, 20, v{10+4*k}
        v_lshlrev_b32 v6, 3, v6
        ds_read_b64 {vr(8+4*k,2)}, v6 offset:{L_EA}""")
    for k, s in enumerate((sRec, 4, 5)):
        o(f"""s_waitcnt lgkmcnt({2-k})
        buffer_store_dwordx3 {vr(8+4*k,3)}, v5, {sr(WS,4)}, s{s} offen""")
    o(f"""s_cmp_lg_u32 s{sWave}, 0
    s_cbranch_scc1 L1_fin
    ds_read_b32 v22, v3 offset:{L_SORT+12288}
    s_add_u32 s4, s{sRec}, 36864
    s_waitcnt lgkmcnt(0)
    v_lshrrev_b32 v6, 20, v22
    v_lshlrev_b32 v6, 3, v6
    ds_read_b64 v[20:21], v6 offset:{L_EA}
    s_waitcnt lgkmcnt(0)
    buffer_store_dwordx3 v[20:22], v5, {sr(WS,4)}, s4 offen
    L1_fin:""")
    if OPT["stamp"]:
        st()
        o("s_waitcnt vmcnt(0)")
        st()
        st.flush(WS, sWave, 30)
    o("L1_end:\ns_endpgm")
    vW, vX, vAcc = 8, 40, 56
    o(f"""L1_tab:
    s_cmp_eq_u32 s{sWave}, 13
    s_cbranch_scc1 L1_idle
    s_sub_u32 s{sRt}, s{sWave}, 14
    s_waitcnt lgkmcnt(0)""")
    xw_issue(o, vW, vX, 2, 5, WM, 0, XS, sXo, sRt)
    o(f"""s_lshl_b32 s{sLw}, s{sRt}, 13
    s_add_u32 s{sLw}, s{sLw}, {L_W}
    s_mov_b32 s{sSelE}, 0x05040100
    s_mov_b32 s{sSelO}, 0x07060302
    s_barrier
    s_barrier
    s_waitcnt vmcnt(0)""")
    xw_compute(o, vW, vX, vAcc, 2, 5, sLw, sSelE, sSelO)
    o(f"""v_lshrrev_b32 v5, 5, v2
    v_lshlrev_b32 v5, 9, v5
    v_and_b32 v6, 31, v2
    v_lshl_add_u32 v5, v6, 2, v5
    s_lshl_b32 s4, s{sRt}, 12
    s_add_u32 s4, s4, s{sXo}
    s_add_u32 s4, s4, {WS_AT}""")
    for q in range(16):
        o(f"""v_cvt_pk_bf16_f32 v{vW+q}, v{vAcc+q}, v{vAcc+16+q}
        buffer_store_dword v{vW+q}, v5, {sr(ATS,4)}, s4 offen offset:{row_of(q)*128}""")
    o("""s_branch L1_out
    L1_idle:
    s_waitcnt lgkmcnt(0)
    s_barrier
    s_barrier
    s_branch L1_out""")
    return o, lds, 88, 80


def gen_k2():
    o = Asm()
    SLOTS, NGMAX, RS = 272, 472, 272
    L_EA = 0
    L_DENSE = L_EA + 16 * SLOTS * 8
    L_DESC = L_DENSE + NGMAX * 32
    L_HIST = L_DESC + NGMAX * 4
    L_EAZ = L_HIST + 256
    L_FLAG = L_EAZ + 8
    L_AGG = L_EAZ + 16
    L_WU = L_AGG + 50 * RS
    L_BT = L_WU + 16384
    L_STG = L_BT + 50 * RS
    STG = 4192
    L_LIST = L_STG + 4096
    LSTR = 528
    L_W2 = L_LIST + 32768
    lds = L_STG + 16 * STG
    assert lds <= 163840 and L_W2 + 16384 <= lds and L_AGG % 16 == 0 and L_AGG + 128 < 65536
    NULLW = (L_EAZ << 16) | 0xFFFF
    WS, AT, XS, WM, WU, OUT = 16, 20, 24, 28, 32, 36
    sWave, sB, sXo, sSelE, sSelO, sRun, sK, sStr, s128, sRedo = 6, 7, 8, 9, 10, 11, 12, 13, 14, 15
    sC = 40
    sMask = 44
    sBad = 60
    st = Stamp(o, 64, 1)
    o("s_cmp_ge_u32 s2, 256\ns_cbranch_scc1 L2_end")
    st()
    o(f"""s_load_dwordx2 {sr(WS,2)}, s[0:1], 64
    s_load_dwordx2 {sr(AT,2)}, s[0:1], 64
    s_load_dwordx2 {sr(XS,2)}, s[0:1], 0
    s_load_dwordx2 {sr(WM,2)}, s[0:1], 32
    s_load_dwordx2 {sr(WU,2)}, s[0:1], 40
    s_load_dwordx2 {sr(OUT,2)}, s[0:1], 48
    v_lshrrev_b32 v1, 6, v0
    v_and_b32 v2, 63, v0
    v_readfirstlane_b32 s{sWave}, v1
    s_and_b32 s{sB}, s2, 7
    s_lshl_b32 s{sB}, s{sB}, 5
    s_lshr_b32 s4, s2, 3
    s_add_u32 s{sB}, s{sB}, s4
    s_mov_b32 s{WS+2}, {WS_END}
    s_mov_b32 s{WS+3}, 0x20000
    v_lshrrev_b32 v3, 2, v0
    v_lshlrev_b32 v4, 10, v3
    s_lshl_b32 s4, s{sB}, 2
    s_mov_b32 s{AT+2}, {AT_BYTES + 3168}
    s_mov_b32 s{AT+3}, 0x20000
    s_mov_b32 s{XS+2}, {N*128}
    s_mov_b32 s{XS+3}, 0x20000
    s_mov_b32 s{WM+2}, {132*128}
    s_mov_b32 s{WM+3}, 0x20000
    s_mov_b32 s{WU+2}, {128*128}
    s_mov_b32 s{WU+3}, 0x20000
    s_mov_b32 s{OUT+3}, 0x20000
    s_mul_i32 s{sXo}, s{sB}, {NPB*128}
    s_add_u32 s{OUT+2}, s{sXo}, {NPB*128}
    s_min_u32 s{OUT+2}, s{OUT+2}, {N*128}
    v_lshlrev_b32 v5, 4, v0
    v_and_b32 v6, 31, v0
    v_lshlrev_b32 v6, 1, v6
    s_movk_i32 s5, {128*128}
    s_waitcnt lgkmcnt(0)""")
    vTab, vWU4, vW3 = 7, 8, 12
    o(f"""buffer_load_dword v{vTab}, v4, {sr(WS,4)}, s4 offen
    buffer_load_dwordx4 {vr(vWU4,4)}, v5, {sr(WU,4)}, 0 offen""")
    for t in range(2):
        for k in range(4):
            o(f"buffer_load_ushort v{vW3+4*t+k}, v6, {sr(WM,4)}, s5 offen offset:{k*128+t*64}")
    o(f"""s_add_u32 s{AT}, s{AT}, {WS_AT - 3168}
    s_addc_u32 s{AT+1}, s{AT+1}, 0""")
    vBW, vBX_, vBAcc = 56, 88, 24
    o(f"s_cmp_ge_u32 s{sWave}, 2\ns_cbranch_scc1 L2_nob1")
    xw_issue(o, vBW, vBX_, 2, 20, WM, 8192, XS, sXo, sWave)
    o("L2_nob1:")
    o(f"""v_mov_b32 v20, {hex(NULLW)}
    v_mov_b32 v21, v20
    v_mov_b32 v22, v20
    v_mov_b32 v23, v20
    v_add_u32 v24, {L_LIST}, v5
    ds_write_b128 v24, v[20:23]
    ds_write_b128 v24, v[20:23] offset:16384
    v_cmp_gt_u32 vcc, {NGMAX*2}, v0
    v_lshlrev_b32 v25, 2, v0
    v_mov_b32 v26, {49*RS}
    s_mov_b64 exec, vcc
    ds_write_b128 v5, v[20:23] offset:{L_DENSE}
    s_mov_b64 exec, -1
    v_cmp_gt_u32 vcc, {NGMAX}, v0
    s_movk_i32 s4, {NGMAX+68}
    v_cmp_gt_u32 s[44:45], s4, v0
    s_nop 0
    v_cndmask_b32 v26, 0, v26, vcc
    s_mov_b64 exec, s[44:45]
    ds_write_b32 v25, v26 offset:{L_DESC}
    s_mov_b64 exec, -1""")
    vQ, vWb, vRem, vGa = 20, 21, 22, 23
    o(f"""v_and_b32 v{vQ}, 3, v0
    s_mov_b32 s4, {RECB}
    v_mul_lo_u32 v{vWb}, v3, s4
    s_mov_b32 s{sSelE}, 0x05040100
    s_mov_b32 s{sSelO}, 0x07060302
    s_movk_i32 s{sStr}, {LSTR}
    s_movk_i32 s{s128}, 128
    s_mov_b32 s{sRedo}, 0
    s_mul_i32 s{sRun}, s{sWave}, {SLOTS}
    s_mov_b32 s5, {WS_REC}""")
    for i in range(4):
        o(f"s_movk_i32 s{sC+i}, {3168 - 1056*i}")
    o(f"""s_waitcnt lgkmcnt(0)
    s_barrier
    s_cmp_ge_u32 s{sWave}, 2
    s_cbranch_scc1 L2_w9
    s_waitcnt vmcnt(21)
    s_branch L2_wd
    L2_w9:
    s_waitcnt vmcnt(9)
    L2_wd:""")
    st()
    vRec = 24
    o(f"""v_and_b32 v{vGa}, 0xffff, v{vTab}
    v_lshrrev_b32 v{vTab}, 16, v{vTab}
    v_add_u32 v{vGa}, v{vGa}, v{vQ}
    v_sub_u32 v{vRem}, v{vTab}, v{vQ}
    v_mad_u32_u24 v{vGa}, v{vGa}, 12, v{vWb}""")
    for r in range(8):
        o(f"v_cmp_lt_i32 {sr(sMask+2*r,2)}, {4*r}, v{vRem}")
    o(f"v_cmp_lt_u32 {sr(sBad,2)}, 32, v{vTab}")
    for r in range(8):
        o(f"""s_mov_b64 exec, {sr(sMask+2*r,2)}
        buffer_load_dwordx3 {vr(vRec+4*r,3)}, v{vGa}, {sr(WS,4)}, s5 offen offset:{48*r}""")
    o("s_mov_b64 exec, -1")
    for r in range(8):
        o(f"""v_mbcnt_lo_u32_b32 v{vRec+4*r+3}, s{sMask+2*r}, 0
        v_mbcnt_hi_u32_b32 v{vRec+4*r+3}, s{sMask+2*r+1}, v{vRec+4*r+3}
        v_add_lshl_u32 v{vRec+4*r+3}, v{vRec+4*r+3}, s{sRun}, 3
        s_bcnt1_i32_b64 s4, {sr(sMask+2*r,2)}
        s_add_u32 s{sRun}, s{sRun}, s4""")
    o(f"""s_mul_i32 s4, s{sWave}, {SLOTS}
    s_add_u32 s4, s4, {SLOTS}
    s_cmp_gt_u32 s{sRun}, s4
    s_cselect_b32 s4, 1, 0
    s_or_b32 s{sBad}, s{sBad}, s4
    s_or_b32 s{sBad}, s{sBad}, s{sBad+1}
    s_cbranch_scc0 L2_ok1
    v_mov_b32 v20, 0
    v_mov_b32 v21, 1
    ds_write_b32 v20, v21 offset:{L_FLAG}
    L2_ok1:
    s_waitcnt vmcnt(8)""")
    o(f"""v_lshrrev_b32 v20, 3, v0
    v_lshlrev_b32 v20, 7, v20
    v_and_b32 v21, 7, v0
    v_lshl_add_u32 v20, v21, 3, v20
    v_add_u32 v20, {L_WU}, v20
    v_perm_b32 v4, v{vWU4+1}, v{vWU4}, s{sSelE}
    v_perm_b32 v5, v{vWU4+3}, v{vWU4+2}, s{sSelE}
    v_perm_b32 v6, v{vWU4+1}, v{vWU4}, s{sSelO}
    v_perm_b32 v7, v{vWU4+3}, v{vWU4+2}, s{sSelO}
    ds_write2_b64 v20, v[4:5], v[6:7] offset0:0 offset1:8""")
    Y0, Y1, T, F, ID = 8, 24, 40, 56, 72
    AX, BX0, BX1 = 80, 120, 124
    Nn, Da, Db, Dk, Rr, R0, R1, CK = 84, 86, 88, 90, 92, 94, 96, 98
    WD, GA = 100, 104
    SL, DR, DH, FA = 108, 109, 110, 112
    pW, pS, pR, pH = 114, 115, 116, 117
    cV, cF, cT, cC = 118, 119, 4, 5
    o(f"s_mov_b32 s4, {NLOG2E}\nv_cmp_lt_u32 vcc, 31, v2")
    for i in range(8):
        o(f"v_lshlrev_b32 v{vW3+i}, 16, v{vW3+i}\nv_mul_f32 v{vW3+i}, s4, v{vW3+i}")
    for t, bx in enumerate((BX0, BX1)):
        for pr in range(2):
            a = vW3 + 4 * t + 2 * pr
            o(f"""v_cvt_pk_bf16_f32 v8, v{a}, v{a+1}
            v_lshlrev_b32 v9, 16, v8
            v_and_b32 v10, 0xffff0000, v8
            v_sub_f32 v9, v{a}, v9
            v_sub_f32 v10, v{a+1}, v10
            v_cvt_pk_bf16_f32 v9, v9, v10
            v_cndmask_b32 v{bx+pr}, v8, v9, vcc""")
    o(f"s_cmp_ge_u32 s{sWave}, 2\ns_cbranch_scc1 L2_nob2")
    o(f"s_lshl_b32 s62, s{sWave}, 13\ns_add_u32 s62, s62, {L_W2}")
    bjob(o, vBW, vBX_, 2, 62, sSelE, sSelO, sWave, L_BT, L_AGG, RS)
    o("L2_nob2:")
    st()
    vRank, vLb = 8, 56
    o(f"v_mov_b32 v20, 1\nv_mov_b32 v21, {L_LIST}")
    for r in range(8):
        w = vRec + 4 * r
        o(f"""s_mov_b64 exec, {sr(sMask+2*r,2)}
        s_cbranch_execz L2_p1done
        s_waitcnt vmcnt({7-r})
        v_bfe_u32 v{vLb+r}, v{w+2}, 14, 6
        v_lshlrev_b32 v22, 2, v{vLb+r}
        ds_add_rtn_u32 v{vRank+r}, v22, v20 offset:{L_HIST}
        ds_write_b64 v{w+3}, {vr(w,2)}
        v_and_b32 v{w+2}, 0x3fff, v{w+2}
        v_lshl_or_b32 v{w+2}, v{w+3}, 16, v{w+2}
        v_mad_u32_u24 v{vLb+r}, v{vLb+r}, s{sStr}, v21""")
    o("L2_p1done:\ns_waitcnt lgkmcnt(0)")
    for r in range(8):
        w = vRec + 4 * r
        o(f"""s_mov_b64 exec, {sr(sMask+2*r,2)}
        s_cbranch_execz L2_p2done
        v_min_u32 v{vRank+r}, 0x83, v{vRank+r}
        v_lshl_add_u32 v{vLb+r}, v{vRank+r}, 2, v{vLb+r}
        ds_write_b32 v{vLb+r}, v{w+2}""")
    o(f"""L2_p2done:
    s_mov_b64 exec, -1
    v_lshlrev_b32 v8, 2, v2
    v_mov_b32 v9, 0
    v_lshrrev_b32 v10, 4, v0
    v_lshlrev_b32 v11, 2, v10
    v_mul_u32_u24 v10, {RS}, v10
    v_and_b32 v12, 15, v0
    v_lshl_add_u32 v10, v12, 4, v10
    s_lshl_b32 s4, s{sWave}, 5
    v_mad_u32_u24 v13, v2, s{sStr}, v21
    v_add_u32 v13, s4, v13
    v_mul_u32_u24 v14, {RS}, v2
    s_waitcnt lgkmcnt(0)
    s_barrier""")
    st()
    o(f"""ds_read_b32 v15, v8 offset:{L_HIST}
    ds_read_b32 v16, v9 offset:{L_FLAG}
    ds_read_b128 v[24:27], v13
    ds_read_b128 v[28:31], v13 offset:16
    ds_read_b32 v17, v11 offset:{L_HIST}
    ds_read_b128 v[32:35], v10 offset:{L_AGG}
    s_waitcnt lgkmcnt(4)
    v_add_u32 v18, 7, v15
    v_lshrrev_b32 v18, 3, v18
    v_mov_b32 v19, v18
    v_cmp_lt_u32 {sr(sBad,2)}, s{s128}, v15
    v_readfirstlane_b32 s4, v16""")
    dpp_scan(o, 19)
    o(f"""v_cmp_lt_u32 vcc, s{sWave}, v18
    v_sub_u32 v18, v19, v18
    v_readlane_b32 s{sK}, v19, 63
    v_add_lshl_u32 v18, v18, s{sWave}, 2
    v_lshlrev_b32 v19, 3, v18
    s_or_b32 s4, s4, s{sBad}
    s_or_b32 s4, s4, s{sBad+1}
    s_cbranch_scc1 L2_slow
    s_cmp_gt_u32 s{sK}, {NGMAX}
    s_cbranch_scc1 L2_slow
    s_waitcnt lgkmcnt(0)
    s_mov_b64 exec, vcc
    ds_write_b128 v19, v[24:27] offset:{L_DENSE}
    ds_write_b128 v19, v[28:31] offset:{L_DENSE+16}
    ds_write_b32 v18, v14 offset:{L_DESC}
    s_mov_b64 exec, -1
    v_cmp_gt_u32 vcc, {50*16}, v0
    v_sub_u32 v17, 0, v17
    v_and_b32 v17, 7, v17
    v_cvt_f32_u32 v17, v17
    v_mul_f32 v32, -v17, v32
    v_mul_f32 v33, -v17, v33
    v_mul_f32 v34, -v17, v34
    v_mul_f32 v35, -v17, v35
    s_mov_b64 exec, vcc
    ds_write_b128 v10, v[32:35] offset:{L_AGG}
    s_mov_b64 exec, -1""")
    o(f"""s_add_u32 s{sK}, s{sK}, 3
    s_lshr_b32 s{sK}, s{sK}, 2
    s_add_u32 s{sK}, s{sK}, 15
    s_sub_u32 s{sK}, s{sK}, s{sWave}
    s_lshr_b32 s{sK}, s{sK}, 4""")
    o(f"""s_mul_i32 s4, s{sWave}, {STG}
    s_add_u32 s4, s4, {L_STG}
    s_mov_b32 m0, s4
    v_lshrrev_b32 v8, 3, v2
    v_lshlrev_b32 v{pW}, 4, v8
    s_lshl_b32 s5, s{sWave}, 7
    v_add_u32 v{pW}, s5, v{pW}
    v_bfe_u32 v9, v2, 4, 1
    v_and_b32 v10, 7, v2
    v_xor_b32 v9, v9, v10
    v_lshlrev_b32 v{cV}, 4, v9
    v_bfe_u32 v9, v2, 2, 1
    v_and_b32 v10, 1, v2
    v_lshl_add_u32 v9, v9, 1, v10
    v_bfe_u32 v11, v2, 1, 1
    v_bfe_u32 v12, v2, 3, 2
    v_lshl_add_u32 v11, v12, 1, v11
    v_lshl_add_u32 v12, v9, 3, v11
    v_lshl_add_u32 v{pS}, v12, 2, s5
    v_and_b32 v12, 3, v11
    v_mul_u32_u24 v12, 1056, v12
    v_lshrrev_b32 v13, 2, v11
    v_lshl_add_u32 v13, v9, 1, v13
    v_lshl_add_u32 v12, v13, 7, v12
    v_lshrrev_b32 v13, 5, v2
    v_xor_b32 v14, v13, v10
    v_lshl_add_u32 v12, v14, 4, v12
    v_add_u32 v{cF}, s4, v12
    s_lshl_b32 s5, s{sWave}, 4
    v_bfe_u32 v12, v2, 2, 2
    v_lshl_add_u32 v{pR}, v12, 2, s5
    v_lshl_add_u32 v{pH}, v13, 3, s5
    v_bfe_u32 v12, v2, 4, 1
    v_lshlrev_b32 v12, 5, v12
    v_lshl_add_u32 v12, v13, 7, v12
    v_and_b32 v14, 3, v2
    v_lshl_add_u32 v12, v14, 3, v12
    v_add_u32 v{cT}, {L_BT}, v12
    v_and_b32 v12, 31, v2
    v_lshlrev_b32 v{cC}, 2, v12
    v_mov_b32 v15, 0x3f80
    v_lshlrev_b32 v14, 4, v10
    v_lshlrev_b32 v15, v14, v15
    v_cmp_gt_u32 vcc, 2, v9
    v_lshlrev_b32 v13, 3, v13
    v_sub_u32 v12, v12, v13
    v_cndmask_b32 v{AX+2}, 0, v15, vcc
    v_cndmask_b32 v{AX+3}, v15, 0, vcc
    v_lshrrev_b32 v12, 1, v12""")
    for sp in range(2):
        for i in range(4):
            o(f"""v_cmp_eq_u32 vcc, {8*sp+i}, v12
            s_nop 1
            v_cndmask_b32 v{ID+4*sp+i}, 0, v15, vcc""")
    o(f"""v_mov_b32 v{R1}, 0
    v_mov_b32 v{R1+1}, 0
    v_mov_b32 v{CK}, 0
    v_mov_b32 v{CK+1}, 0
    v_mov_b32 v{FA}, v{cC}
    v_mov_b32 v{FA+1}, v{cC}
    s_waitcnt lgkmcnt(0)
    s_barrier""")
    st()
    o(f"s_cmp_eq_u32 s{sK}, 0\ns_cbranch_scc1 L2_post")

    def gaddr(src):
        return [f"v_mad_u32_u16 v{GA+i}, v{src+i}, s{s128}, v{cV}" for i in range(4)]

    def dma():
        return [f"buffer_load_dwordx4 v{GA+i}, {sr(AT,4)}, s{sC+i} offen offset:{1056*i} lds" for i in range(4)]

    def frag_reads():
        return [f"ds_read_b64 {vr(AX,2)}, v{SL}",
                f"ds_read_b64_tr_b16 {vr(BX0+2,2)}, v{DR}",
                f"ds_read_b128 {vr(F,4)}, v{cF}",
                f"ds_read_b128 {vr(F+4,4)}, v{cF} offset:32",
                f"ds_read_b64_tr_b16 {vr(BX1+2,2)}, v{DR} offset:64",
                f"ds_read_b128 {vr(F+8,4)}, v{cF} offset:64",
                f"ds_read_b128 {vr(F+12,4)}, v{cF} offset:96"]

    def idx_reads(kw, ks, kh):
        return [f"ds_read_b128 {vr(WD,4)}, v{pW} offset:{L_DENSE + kw*2048}",
                f"ds_read_u16 v{SL}, v{pS} offset:{L_DENSE + ks*2048 + 2}",
                f"ds_read_b32 v{DR}, v{pR} offset:{L_DESC + ks*256}",
                f"ds_read_b64 {vr(DH,2)}, v{pH} offset:{L_DESC + kh*256}"]

    def mf(t):
        y, bx = (Y0, BX0) if t == 0 else (Y1, BX1)
        return [mfma32(y, AX, bx, "0"), mfma32(y, F + 8 * t, ID), mfma32(y, F + 8 * t + 4, ID + 4)]

    def PF(d, a, b, c):
        return f"v_pk_fma_f32 {vr(d,2)}, {vr(a,2)}, {vr(b,2)}, {vr(c,2)}"

    def chain(Y, dfin, res, filler):
        r = [f"v_pk_add_f32 {vr(Da,2)}, {vr(T,2)}, 1.0 op_sel_hi:[1,0]"]
        cur = Da
        for i in range(1, 8):
            nxt = dfin if i == 7 else (Db if cur == Da else Da)
            src = Y if i == 1 else Nn
            r += [PF(Nn, src, T + 2 * i, src), PF(nxt, cur, T + 2 * i, cur), PF(Nn, Y + 2 * i, cur, Nn)]
            cur = nxt
        r += [f"v_rcp_f32 v{Rr}, v{dfin}", f"v_rcp_f32 v{Rr+1}, v{dfin+1}", filler,
              f"v_pk_mul_f32 {vr(res,2)}, {vr(Nn,2)}, {vr(Rr,2)}"]
        return r

    def exps(Y):
        return [f"v_exp_f32 v{T+i}, v{Y+i}" for i in range(16)]

    for x in idx_reads(0, 0, 0)[:3]:
        o(x)
    o(f"ds_read_b128 {vr(T,4)}, v{pW} offset:{L_DENSE + 2048}\ns_waitcnt lgkmcnt(1)")
    for x in gaddr(WD) + dma():
        o(x)
    o(f"v_add_u32 v{DR}, v{DR}, v{cT}\ns_waitcnt lgkmcnt(0)")
    for x in gaddr(T):
        o(x)
    o("s_waitcnt vmcnt(0)")
    for x in frag_reads():
        o(x)
    o(f"s_waitcnt lgkmcnt(0)\ns_cmp_lt_u32 s{sK}, 2\ns_cbranch_scc1 L2_nog1")
    for x in dma():
        o(x)
    o("L2_nog1:")
    for x in idx_reads(2, 1, 0) + mf(0):
        o(x)
    o("s_nop 12")
    st()
    o(".p2align 6\nL2_loop:")
    m, e = mf(1), exps(Y0)
    for i in range(3):
        o(m[i])
        for x in e[3 * i:3 * i + 3]:
            o(x)
    o(e[9])
    o(f"""s_waitcnt vmcnt(0) lgkmcnt(0)
    v_add_u32 v{DR}, v{DR}, v{cT}
    ds_add_f32 v{FA}, v{R1} offset:{L_AGG+128}
    ds_add_f32 v{FA+1}, v{R1+1} offset:{L_AGG+128}""")
    for x in frag_reads():
        o(x)
    for x in e[10:]:
        o(x)
    o(f"v_add_u32 v{FA}, v{DH}, v{cC}\nv_add_u32 v{FA+1}, v{DH+1}, v{cC}")
    for x in gaddr(WD):
        o(x)
    for x in chain(Y0, Dk, R0, "s_waitcnt lgkmcnt(0)"):
        o(x)
    m, e = mf(0), exps(Y1)
    for i in range(3):
        o(m[i])
        for x in e[3 * i:3 * i + 3]:
            o(x)
    o(e[9])
    o(f"""ds_add_f32 v{FA}, v{R0} offset:{L_AGG}
    ds_add_f32 v{FA+1}, v{R0+1} offset:{L_AGG}
    s_cmp_lt_u32 s{sK}, 3
    s_cbranch_scc1 L2_nog""")
    for x in dma():
        o(x)
    o("L2_nog:")
    for x in idx_reads(3, 2, 1):
        o(x)
    o(f"s_sub_u32 s{sK}, s{sK}, 1\ns_cmp_lg_u32 s{sK}, 0")
    for x in e[10:]:
        o(x)
    o(f"""v_add_u32 v{pW}, 0x800, v{pW}
    v_add_u32 v{pS}, 0x800, v{pS}
    v_add_u32 v{pR}, 0x100, v{pR}
    v_add_u32 v{pH}, 0x100, v{pH}""")
    for x in chain(Y1, Db, R1, PF(CK, Dk, Db, CK)):
        o(x)
    o(f"""s_cbranch_scc1 L2_loop
    ds_add_f32 v{FA}, v{R1} offset:{L_AGG+128}
    ds_add_f32 v{FA+1}, v{R1+1} offset:{L_AGG+128}
    s_mov_b32 s4, {f32(2.0**120)}
    v_add_f32 v{CK}, v{CK}, v{CK+1}
    v_cmp_ngt_f32 vcc, s4, v{CK}
    v_mov_b32 v8, 0
    v_mov_b32 v9, 1
    s_mov_b64 exec, vcc
    ds_write_b32 v8, v9 offset:{L_FLAG}
    s_mov_b64 exec, -1""")
    eX, eW, eA, eAcc, eG = 8, 16, 48, 56, 64
    o("L2_post:")
    st()
    o(f"""s_cmp_ge_u32 s{sWave}, 8
    s_cbranch_scc1 L2_ewait
    s_lshr_b32 s4, s{sWave}, 1
    s_and_b32 s5, s{sWave}, 1
    v_and_b32 v80, 15, v2
    v_lshrrev_b32 v81, 4, v2
    s_lshl_b32 s62, s4, 4
    v_add_u32 v82, s62, v80
    v_lshlrev_b32 v83, 7, v82
    v_lshl_add_u32 v83, v81, 4, v83
    s_nop 7
    buffer_load_dwordx4 {vr(eX,4)}, v83, {sr(XS,4)}, s{sXo} offen
    buffer_load_dwordx4 {vr(eX+4,4)}, v83, {sr(XS,4)}, s{sXo} offen offset:64
    v_lshlrev_b32 v84, 10, v81
    v_bfe_u32 v85, v2, 2, 2
    v_lshl_add_u32 v84, v85, 7, v84
    v_and_b32 v85, 3, v2
    v_lshl_add_u32 v84, v85, 3, v84
    s_lshl_b32 s63, s5, 5
    s_add_u32 s63, s63, {L_WU}
    v_add_u32 v84, s63, v84
    s_waitcnt lgkmcnt(0)""")
    for t in range(2):
        for s in range(4):
            for u in range(2):
                o(f"ds_read_b64_tr_b16 {vr(eW + 16*t + 4*s + 2*u, 2)}, v84 offset:{s*4096 + u*512 + t*64}")
        if t == 0:
            o("s_waitcnt lgkmcnt(0)")
    o(f"""v_mul_u32_u24 v85, {RS}, v82
    v_lshl_add_u32 v85, v81, 5, v85
    v_cmp_gt_u32 {sr(sBad,2)}, {NPB}, v82
    v_lshl_add_u32 v86, v81, 2, s62
    v_lshlrev_b32 v86, 7, v86
    v_lshl_add_u32 v86, v80, 2, v86
    s_lshl_b32 s63, s5, 6
    s_add_u32 s63, s63, s{sXo}
    s_waitcnt vmcnt(0) lgkmcnt(0)""")
    for t in range(2):
        for s in range(2):
            o(mfma16(eAcc + 4 * t, eX + 4 * s, eW + 16 * t + 4 * s, "0" if s == 0 else None))
    o("s_barrier")
    st()
    for s in range(2):
        for u in range(2):
            o(f"ds_read_b128 {vr(eG + 8*s + 4*u, 4)}, v85 offset:{L_AGG + s*128 + u*16}")
    o(f"s_mov_b32 s4, {NLN2}\nv_mov_b32 v87, 0")
    for s in range(2):
        o(f"s_waitcnt lgkmcnt({2 - 2*s})")
        for i in range(8):
            o(f"v_mul_f32 v{eG+8*s+i}, s4, v{eG+8*s+i}")
        for i in range(4):
            o(f"v_cvt_pk_bf16_f32 v{eA+4*s+i}, v{eG+8*s+2*i}, v{eG+8*s+2*i+1}")
    o("s_nop 1")
    for s in range(2):
        for t in range(2):
            o(mfma16(eAcc + 4 * t, eA + 4 * s, eW + 16 * t + 8 + 4 * s))
    for i in range(16):
        o(f"v_fma_f32 v87, 0, v{eG+i}, v87")
    o(f"s_mov_b32 s4, {NLOG2E}")
    for i in range(8):
        o(f"v_mul_f32 v{eG+i}, s4, v{eAcc+i}")
    for i in range(8):
        o(f"v_exp_f32 v{eG+i}, v{eG+i}")
    for i in range(8):
        o(f"v_add_f32 v{eG+i}, 1.0, v{eG+i}")
    for i in range(8):
        o(f"v_rcp_f32 v{eG+i}, v{eG+i}")
    for i in range(8):
        o(f"v_mul_f32 v{eG+i}, v{eAcc+i}, v{eG+i}")
    for r in range(4):
        o(f"""v_cvt_pk_bf16_f32 v{eA+r}, v{eG+r}, v{eG+4+r}
        buffer_store_dword v{eA+r}, v86, {sr(OUT,4)}, s63 offen offset:{r*128}""")
    o(f"""v_cmp_u_f32 vcc, v87, v87
    v_mov_b32 v8, 0
    v_mov_b32 v9, 1
    s_and_b64 exec, vcc, {sr(sBad,2)}
    ds_write_b32 v8, v9 offset:{L_FLAG}
    s_mov_b64 exec, -1
    s_branch L2_chk
    L2_ewait:
    s_waitcnt lgkmcnt(0)
    s_barrier""")
    if OPT["stamp"]:
        o(f"s_memrealtime {sr(st.sb + 2 * (st.n - 1), 2)}")
    o(f"""v_mov_b32 v8, 0
    L2_chk:
    s_waitcnt lgkmcnt(0)
    s_barrier
    ds_read_b32 v9, v8 offset:{L_FLAG}
    s_waitcnt lgkmcnt(0)
    v_readfirstlane_b32 s4, v9
    s_cmp_gt_u32 s4, s{sRedo}
    s_cbranch_scc1 L2_slow""")
    if OPT["stamp"]:
        st()
        o("s_waitcnt vmcnt(0)")
        st()
        st.flush(WS, sWave, 30)
    o("L2_end:\ns_endpgm")
    o(f"""L2_slow:
    s_mov_b32 s{sRedo}, 1
    s_waitcnt vmcnt(0) lgkmcnt(0)
    s_barrier
    v_lshrrev_b32 v10, 4, v0
    v_mul_u32_u24 v10, {RS}, v10
    v_and_b32 v12, 15, v0
    v_lshl_add_u32 v10, v12, 4, v10
    v_mov_b32 v12, 0
    v_mov_b32 v13, 0
    v_mov_b32 v14, 0
    v_mov_b32 v15, 0
    v_cmp_gt_u32 vcc, {50*16}, v0
    v_lshlrev_b32 v6, 1, v2
    s_movk_i32 s5, {128*128}
    s_mov_b64 exec, vcc
    ds_write_b128 v10, v[12:15] offset:{L_AGG}
    s_mov_b64 exec, -1""")
    for k in range(4):
        o(f"buffer_load_ushort v{16+k}, v6, {sr(WM,4)}, s5 offen offset:{k*128}")
    o(f"s_mov_b32 s4, {NLOG2E}\ns_waitcnt vmcnt(0) lgkmcnt(0)\ns_barrier")
    for k in range(4):
        o(f"v_lshlrev_b32 v{16+k}, 16, v{16+k}\nv_mul_f32 v{16+k}, s4, v{16+k}")
    o(f"""v_add_u32 v7, {L_BT}, v6
    v_lshlrev_b32 v8, 2, v2
    s_mov_b32 s44, s{sWave}
    s_movk_i32 s49, {RS}
    L2_sseg:
    s_lshl_b32 s45, s44, 8
    s_add_u32 s45, s45, s{sB}
    s_lshl_b32 s45, s45, 2
    buffer_load_dword v20, v12, {sr(WS,4)}, s45 offen
    s_waitcnt vmcnt(0)
    v_readfirstlane_b32 s46, v20
    s_lshr_b32 s47, s46, 16
    s_and_b32 s46, s46, 0xffff
    s_mul_i32 s46, s46, 12
    s_mul_i32 s48, s44, {RECB}
    s_add_u32 s46, s46, s48
    s_add_u32 s46, s46, {WS_REC}
    s_cmp_eq_u32 s47, 0
    s_cbranch_scc1 L2_snext
    L2_sedge:
    buffer_load_dwordx3 v[20:22], v12, {sr(WS,4)}, s46 offen
    s_waitcnt vmcnt(0)
    v_and_b32 v23, 0x3fff, v22
    v_lshl_add_u32 v23, v23, 7, v6
    buffer_load_ushort v23, v23, {sr(AT,4)}, s{sC} offen
    v_bfe_u32 v22, v22, 14, 6
    v_mad_u32_u24 v24, v22, s49, v7
    ds_read_u16 v25, v24
    ds_read_u16 v26, v24 offset:128
    v_mad_u32_u24 v24, v22, s49, v8
    v_lshlrev_b32 v27, 16, v20
    v_and_b32 v20, 0xffff0000, v20
    v_lshlrev_b32 v28, 16, v21
    v_and_b32 v21, 0xffff0000, v21
    v_mul_f32 v27, v27, v16
    v_fmac_f32 v27, v20, v17
    v_fmac_f32 v27, v28, v18
    v_fmac_f32 v27, v21, v19
    s_waitcnt vmcnt(0) lgkmcnt(0)
    v_lshlrev_b32 v23, 16, v23
    v_lshlrev_b32 v25, 16, v25
    v_lshlrev_b32 v26, 16, v26
    v_add_f32 v27, v27, v26
    v_add_f32 v27, v27, v25
    v_add_f32 v27, v27, v23
    v_exp_f32 v28, v27
    s_add_u32 s46, s46, 12
    v_add_f32 v28, 1.0, v28
    v_rcp_f32 v28, v28
    s_sub_u32 s47, s47, 1
    v_mul_f32 v28, v27, v28
    ds_add_f32 v24, v28 offset:{L_AGG}
    s_cmp_lg_u32 s47, 0
    s_cbranch_scc1 L2_sedge
    L2_snext:
    s_add_u32 s44, s44, 16
    s_cmp_lt_u32 s44, 256
    s_cbranch_scc1 L2_sseg
    s_branch L2_post""")
    return o, lds, 128, 96


def bjob(o, vBW, vBX, vlane, sLds, sSelE, sSelO, sWave, L_BT, L_AGG, RS):
    vt = 4
    acc = 8
    o(f"""v_lshrrev_b32 v{vt}, 3, v{vlane}
    v_lshlrev_b32 v{vt}, 7, v{vt}
    v_and_b32 v{vt+1}, 7, v{vlane}
    v_lshl_add_u32 v{vt}, v{vt+1}, 3, v{vt}
    v_add_u32 v{vt}, s{sLds}, v{vt}""")
    for i in range(8):
        w = vBW + 4 * i
        p = acc + 4 * (i % 4)
        if i == 4:
            o("s_waitcnt lgkmcnt(0)")
        o(f"""v_perm_b32 v{p}, v{w+1}, v{w}, s{sSelE}
        v_perm_b32 v{p+1}, v{w+3}, v{w+2}, s{sSelE}
        v_perm_b32 v{p+2}, v{w+1}, v{w}, s{sSelO}
        v_perm_b32 v{p+3}, v{w+3}, v{w+2}, s{sSelO}
        ds_write_b64 v{vt}, {vr(p,2)} offset:{i*1024}
        ds_write_b64 v{vt}, {vr(p+2,2)} offset:{i*1024+64}""")
    o(f"""v_lshrrev_b32 v{vt}, 5, v{vlane}
    v_lshlrev_b32 v{vt}, 10, v{vt}
    v_bfe_u32 v{vt+1}, v{vlane}, 2, 2
    v_lshl_add_u32 v{vt}, v{vt+1}, 7, v{vt}
    v_bfe_u32 v{vt+1}, v{vlane}, 4, 1
    v_lshl_add_u32 v{vt}, v{vt+1}, 5, v{vt}
    v_and_b32 v{vt+1}, 3, v{vlane}
    v_lshl_add_u32 v{vt}, v{vt+1}, 3, v{vt}
    v_add_u32 v{vt}, s{sLds}, v{vt}
    s_waitcnt lgkmcnt(0)""")
    for t in range(2):
        for s in range(4):
            for u in range(2):
                o(f"ds_read_b64_tr_b16 {vr(vBW + 16*t + 4*s + 2*u, 2)}, v{vt} offset:{s*2048 + u*512 + t*64}")
        o("s_waitcnt lgkmcnt(0)")
    accE, accO = acc, 104
    for t, a in enumerate((accE, accO)):
        for s in range(4):
            o(mfma32(a, vBX + 4 * s, vBW + 16 * t + 4 * s, "0" if s == 0 else None))
    o(f"""v_lshrrev_b32 v{vt}, 5, v{vlane}
    v_lshlrev_b32 v{vt}, 2, v{vt}
    s_lshl_b32 s4, s{sWave}, 5
    v_add_u32 v{vt+2}, s4, v{vt}
    v_mul_u32_u24 v{vt}, {RS}, v{vt+2}
    v_and_b32 v{vt+3}, 31, v{vlane}
    v_lshl_add_u32 v{vt+1}, v{vt+3}, 3, v{vt}
    v_lshl_add_u32 v{vt}, v{vt+3}, 2, v{vt}
    v_add_u32 v{vt}, {L_BT}, v{vt}
    s_mov_b32 s4, {NLOG2E}
    s_nop 7""")
    t0 = vBW
    for q in range(16):
        e, d = accE + q, accO + q
        b = t0 + 8 * (q % 4)
        if q and q % 4 == 0:
            o("s_waitcnt lgkmcnt(0)")
        o(f"""v_mul_f32 v{e}, s4, v{e}
        v_mul_f32 v{d}, s4, v{d}
        v_cmp_gt_u32 vcc, {50 - row_of(q)}, v{vt+2}
        v_exp_f32 v{b+2}, v{e}
        v_exp_f32 v{b+3}, v{d}
        v_cvt_pk_bf16_f32 v{b}, v{e}, v{d}
        v_add_f32 v{b+2}, 1.0, v{b+2}
        v_add_f32 v{b+3}, 1.0, v{b+3}
        v_rcp_f32 v{b+2}, v{b+2}
        v_rcp_f32 v{b+3}, v{b+3}
        v_lshlrev_b32 v{b+4}, 16, v{b}
        v_and_b32 v{b+5}, 0xffff0000, v{b}
        v_sub_f32 v{b+4}, v{e}, v{b+4}
        v_sub_f32 v{b+5}, v{d}, v{b+5}
        v_cvt_pk_bf16_f32 v{b+1}, v{b+4}, v{b+5}
        v_mul_f32 v{b+2}, v{e}, v{b+2}
        v_mul_f32 v{b+3}, v{d}, v{b+3}
        s_mov_b64 exec, vcc
        ds_write_b32 v{vt}, v{b} offset:{row_of(q)*RS}
        ds_write_b32 v{vt}, v{b+1} offset:{row_of(q)*RS+128}
        ds_write_b64 v{vt+1}, {vr(b+2,2)} offset:{L_AGG + row_of(q)*RS}
        s_mov_b64 exec, -1""")


def descriptor(name, vgpr, sgpr):
    return f""".section .rodata,"a"
.p2align 6
.amdhsa_kernel {name}
  .amdhsa_next_free_vgpr {vgpr}
  .amdhsa_next_free_sgpr {sgpr}
  .amdhsa_accum_offset {(vgpr + 3) // 4 * 4}
  .amdhsa_group_segment_fixed_size 0
  .amdhsa_kernarg_size 72
  .amdhsa_user_sgpr_count 2
  .amdhsa_user_sgpr_kernarg_segment_ptr 1
  .amdhsa_system_sgpr_workgroup_id_x 1
.end_amdhsa_kernel
"""


def main():
    k1, lds1, v1, s1 = gen_k1()
    k2, lds2, v2, s2 = gen_k2()
    n1, n2 = "mpnn_bin_kernel", "standalone__mpnn_edge_mlp__graph_kernel"
    out = f"""; MPNN edge MLP: launch 1 bins edges by destination bucket and builds A' = -log2e * x @ W1,
; @launch kernel={n1} grid=(256,1,1) block=(1024,1,1) lds={lds1}
; @launch kernel={n2} grid=(256,1,1) block=(1024,1,1) lds={lds2}
.amdgcn_target "amdgcn-amd-amdhsa--gfx950"
.text
"""
    for n, k in ((n1, k1), (n2, k2)):
        out += f".globl {n}\n.p2align 8\n.type {n},@function\n{n}:\n" + k.text()
    out += descriptor(n1, v1, s1) + descriptor(n2, v2, s2)
    open(sys.argv[1], "w").write(out)


main()
```

```python
import struct
import sys

OPT = dict(stamp=0, fx=0)
for a in sys.argv[2:]:
    k, v = a.split("=")
    OPT[k] = int(v)

N, E = 12500, 800000
NB, NPB, CH = 256, 49, 3136
MAGIC, MSHIFT = 21400, 20

WS_TAB = 0
WS_AT = 1 << 19
AT_BYTES = NB * NPB * 128
WS_REC = 4 << 20
RECB = CH * 12
WS_END = WS_REC + NB * RECB
WS_STAMP = 32 << 20


def f32(x):
    return "0x%08x" % struct.unpack("<I", struct.pack("<f", x))[0]


NLOG2E = f32(-1.4426950408889634)
NLN2 = f32(-0.6931471805599453)


class Asm:
    def __init__(self):
        self.l = []

    def __call__(self, s):
        for x in s.strip("\n").split("\n"):
            x = x.strip()
            if x:
                self.l.append(x if x.endswith(":") else "    " + x)

    def text(self):
        return "\n".join(self.l) + "\n"


def vr(a, n):
    return f"v[{a}:{a+n-1}]"


def sr(a, n):
    return f"s[{a}:{a+n-1}]"


def dpp_scan(o, v):
    for m in ("row_shr:1 row_mask:0xf", "row_shr:2 row_mask:0xf", "row_shr:4 row_mask:0xf",
              "row_shr:8 row_mask:0xf", "row_bcast:15 row_mask:0xa", "row_bcast:31 row_mask:0xc"):
        o(f"s_nop 1\nv_add_u32_dpp v{v}, v{v}, v{v} {m} bank_mask:0xf")


def mfma32(d, a, b, c=None):
    cs = vr(d, 16) if c is None else c
    return f"v_mfma_f32_32x32x16_bf16 {vr(d,16)}, {vr(a,4)}, {vr(b,4)}, {cs}"


def mfma16(d, a, b, c=None):
    cs = vr(d, 4) if c is None else c
    return f"v_mfma_f32_16x16x32_bf16 {vr(d,4)}, {vr(a,4)}, {vr(b,4)}, {cs}"


class Stamp:
    def __init__(self, o, sbase, kern):
        self.o, self.sb, self.n, self.kern = o, sbase, 0, kern

    def __call__(self):
        if OPT["stamp"]:
            self.o(f"s_memrealtime {sr(self.sb + 2 * self.n, 2)}")
            self.n += 1

    def flush(self, srd, swave, vt):
        if not OPT["stamp"]:
            return
        o = self.o
        o(f"""s_waitcnt lgkmcnt(0)
        s_mov_b64 exec, -1
        s_lshl_b32 s3, s2, 4
        s_add_u32 s3, s3, s{swave}
        s_lshl_b32 s3, s3, 6
        s_add_u32 s3, s3, {WS_STAMP + self.kern * (1 << 20)}
        s_mov_b32 s{srd+2}, {WS_STAMP + (4 << 20)}
        v_mov_b32 v{vt}, s3""")
        for i in range(self.n):
            o(f"v_mov_b32 v{vt+1}, s{self.sb + 2 * i}\nbuffer_store_dword v{vt+1}, v{vt}, {sr(srd,4)}, 0 offen offset:{4*i}")


def xw_issue(o, vW, vX, vlane, vt, srdW, woff, srdX, sXoff, srt):
    o(f"v_lshlrev_b32 v{vt}, 4, v{vlane}")
    o(f"s_mov_b32 s4, {woff}\ns_mov_b32 s5, {woff + 4096}")
    for i in range(8):
        o(f"buffer_load_dwordx4 {vr(vW+4*i,4)}, v{vt}, {sr(srdW,4)}, s{4 + i // 4} offen offset:{(i % 4) * 1024}")
    o(f"""v_and_b32 v{vt}, 31, v{vlane}
    v_lshlrev_b32 v{vt}, 7, v{vt}
    v_lshrrev_b32 v{vt+1}, 5, v{vlane}
    v_lshl_add_u32 v{vt}, v{vt+1}, 4, v{vt}
    s_lshl_b32 s4, s{srt}, 12
    s_add_u32 s4, s4, s{sXoff}""")
    for s in range(4):
        o(f"buffer_load_dwordx4 {vr(vX+4*s,4)}, v{vt}, {sr(srdX,4)}, s4 offen offset:{32*s}")


def xw_compute(o, vW, vX, vAcc, vlane, vt, sLds, sSelE, sSelO):
    o(f"""v_lshrrev_b32 v{vt}, 3, v{vlane}
    v_lshlrev_b32 v{vt}, 7, v{vt}
    v_and_b32 v{vt+1}, 7, v{vlane}
    v_lshl_add_u32 v{vt}, v{vt+1}, 3, v{vt}
    v_add_u32 v{vt}, s{sLds}, v{vt}""")
    for i in range(8):
        w = vW + 4 * i
        p = vAcc + 4 * i
        o(f"""v_perm_b32 v{p}, v{w+1}, v{w}, s{sSelE}
        v_perm_b32 v{p+1}, v{w+3}, v{w+2}, s{sSelE}
        v_perm_b32 v{p+2}, v{w+1}, v{w}, s{sSelO}
        v_perm_b32 v{p+3}, v{w+3}, v{w+2}, s{sSelO}
        ds_write_b64 v{vt}, {vr(p,2)} offset:{i*1024}
        ds_write_b64 v{vt}, {vr(p+2,2)} offset:{i*1024+64}""")
    o(f"""v_lshrrev_b32 v{vt}, 5, v{vlane}
    v_lshlrev_b32 v{vt}, 10, v{vt}
    v_bfe_u32 v{vt+1}, v{vlane}, 2, 2
    v_lshl_add_u32 v{vt}, v{vt+1}, 7, v{vt}
    v_bfe_u32 v{vt+1}, v{vlane}, 4, 1
    v_lshl_add_u32 v{vt}, v{vt+1}, 5, v{vt}
    v_and_b32 v{vt+1}, 3, v{vlane}
    v_lshl_add_u32 v{vt}, v{vt+1}, 3, v{vt}
    v_add_u32 v{vt}, s{sLds}, v{vt}
    s_waitcnt lgkmcnt(0)""")
    for t in range(2):
        for s in range(4):
            for u in range(2):
                o(f"ds_read_b64_tr_b16 {vr(vW + 16*t + 4*s + 2*u, 2)}, v{vt} offset:{s*2048 + u*512 + t*64}")
        if t == 0:
            o("s_waitcnt lgkmcnt(0)")
    o("s_waitcnt lgkmcnt(0)")
    for t in range(2):
        for s in range(4):
            o(mfma32(vAcc + 16 * t, vX + 4 * s, vW + 16 * t + 4 * s, "0" if s == 0 else None))
    o(f"s_mov_b32 s4, {NLOG2E}\ns_nop 12")
    for q in range(32):
        o(f"v_mul_f32 v{vAcc+q}, s4, v{vAcc+q}")


def row_of(q):
    return (q & 3) + 8 * (q >> 2)


def gen_k1():
    o = Asm()
    L_HIST, L_OFFS, L_SORT, L_EA, L_W = 0, 1024, 2048, 16384, 49152
    lds = L_W + 2 * 8192
    DST, SRC, EAS, WS, XS, WM, ATS = 16, 20, 24, 28, 36, 40, 44
    sWave, sO4, sO8, sNP, sM49, sRec, sTab, sXo, sRt, sLw, sSelE, sSelO = 6, 7, 8, 9, 10, 11, 12, 13, 14, 15, 48, 49
    M0_, M1_ = 32, 34
    st = Stamp(o, 52, 0)
    o("s_cmp_ge_u32 s2, 256\ns_cbranch_scc1 L1_end")
    st()
    o(f"""s_load_dwordx2 {sr(DST,2)}, s[0:1], 24
    s_load_dwordx2 {sr(SRC,2)}, s[0:1], 16
    s_load_dwordx2 {sr(EAS,2)}, s[0:1], 8
    s_load_dwordx2 {sr(WS,2)}, s[0:1], 64
    s_load_dwordx2 {sr(ATS,2)}, s[0:1], 64
    s_load_dwordx2 {sr(XS,2)}, s[0:1], 0
    s_load_dwordx2 {sr(WM,2)}, s[0:1], 32
    v_lshrrev_b32 v1, 6, v0
    v_and_b32 v2, 63, v0
    v_readfirstlane_b32 s{sWave}, v1
    v_lshlrev_b32 v3, 2, v0
    v_mov_b32 v4, 0
    ds_write_b32 v3, v4
    s_mov_b32 s{DST+2}, {E*4}
    s_mov_b32 s{DST+3}, 0x20000
    s_mov_b32 s{SRC+2}, {E*4}
    s_mov_b32 s{SRC+3}, 0x20000
    s_mov_b32 s{EAS+2}, {E*8}
    s_mov_b32 s{EAS+3}, 0x20000
    s_mov_b32 s{WS+2}, {WS_END}
    s_mov_b32 s{WS+3}, 0x20000
    s_mov_b32 s{XS+2}, {N*128}
    s_mov_b32 s{XS+3}, 0x20000
    s_mov_b32 s{WM+2}, {132*128}
    s_mov_b32 s{WM+3}, 0x20000
    s_mov_b32 s{ATS+3}, 0x20000
    s_mul_i32 s{sXo}, s2, {NPB*128}
    s_add_u32 s{ATS+2}, s{sXo}, {WS_AT + NPB*128}
    s_mul_i32 s{sRec}, s2, {RECB}
    s_add_u32 s{sRec}, s{sRec}, {WS_REC}
    s_cmp_ge_u32 s{sWave}, 13
    s_cbranch_scc1 L1_tab""")
    vD, vS, vA, vR, vW_, vP, vOne = 8, 12, 16, 20, 24, 5, 28
    o(f"""s_mul_i32 s{sO4}, s2, {CH*4}
    s_lshl_b32 s{sO8}, s{sO4}, 1
    s_mul_i32 s4, s2, {CH//2}
    s_sub_u32 s{sNP}, {E//2}, s4
    s_min_u32 s{sNP}, s{sNP}, {CH//2}
    v_lshl_add_u32 v{vP}, v1, 7, v2
    v_add_u32 v6, 64, v{vP}
    v_cmp_gt_u32 {sr(M0_,2)}, s{sNP}, v{vP}
    v_cmp_gt_u32 {sr(M1_,2)}, s{sNP}, v6
    v_lshlrev_b32 v6, 3, v{vP}
    v_lshlrev_b32 v7, 4, v{vP}
    s_lshl_b32 s4, s{sWave}, 11
    s_add_u32 m0, s4, {L_EA}
    s_movk_i32 s{sM49}, -{NPB}
    v_mov_b32 v{vOne}, 1
    s_waitcnt lgkmcnt(0)
    s_mov_b64 exec, {sr(M0_,2)}
    buffer_load_dwordx2 {vr(vD,2)}, v6, {sr(DST,4)}, s{sO4} offen
    s_mov_b64 exec, {sr(M1_,2)}
    buffer_load_dwordx2 {vr(vD+2,2)}, v6, {sr(DST,4)}, s{sO4} offen offset:512
    buffer_load_dwordx2 {vr(vS+2,2)}, v6, {sr(SRC,4)}, s{sO4} offen offset:512
    s_mov_b64 exec, {sr(M0_,2)}
    buffer_load_dwordx2 {vr(vS,2)}, v6, {sr(SRC,4)}, s{sO4} offen
    buffer_load_dwordx4 v7, {sr(EAS,4)}, s{sO8} offen lds
    s_mov_b64 exec, {sr(M1_,2)}
    buffer_load_dwordx4 v7, {sr(EAS,4)}, s{sO8} offen offset:1024 lds
    s_mov_b64 exec, -1
    s_barrier
    s_waitcnt vmcnt(4)""")
    st()
    for i in range(4):
        o(f"""v_mul_u32_u24 v{vA+i}, {MAGIC}, v{vD+i}
        v_lshrrev_b32 v{vA+i}, {MSHIFT}, v{vA+i}
        v_mad_i32_i24 v{vD+i}, v{vA+i}, s{sM49}, v{vD+i}
        v_lshlrev_b32 v{vA+i}, 2, v{vA+i}""")
    o(f"""s_mov_b64 exec, {sr(M0_,2)}
    ds_add_rtn_u32 v{vR}, v{vA}, v{vOne}
    ds_add_rtn_u32 v{vR+1}, v{vA+1}, v{vOne}
    s_mov_b64 exec, {sr(M1_,2)}
    ds_add_rtn_u32 v{vR+2}, v{vA+2}, v{vOne}
    ds_add_rtn_u32 v{vR+3}, v{vA+3}, v{vOne}
    s_mov_b64 exec, -1
    v_lshlrev_b32 v6, 21, v{vP}
    v_lshlrev_b32 v7, 4, v2""")
    for i in range(4):
        idc = ((i & 1) + 128 * (i >> 1)) << 20
        o(f"v_lshl_add_u32 v{vW_+i}, v{vD+i}, 14, v6")
        if idc:
            o(f"v_add_u32 v{vW_+i}, {hex(idc)}, v{vW_+i}")
    o(f"""s_waitcnt lgkmcnt(0)
    s_barrier""")
    st()
    vC, vO = 32, 36
    o(f"""ds_read_b128 {vr(vC,4)}, v7
    s_waitcnt lgkmcnt(0)
    v_add_u32 v{vO+2}, v{vC}, v{vC+1}
    v_add_u32 v{vO+3}, v{vO+2}, v{vC+2}
    v_add_u32 v30, v{vO+3}, v{vC+3}
    v_mov_b32 v31, v30""")
    dpp_scan(o, 31)
    o(f"""v_sub_u32 v{vO}, v31, v30
    v_add_u32 v{vO+1}, v{vO}, v{vC}
    v_add_u32 v{vO+2}, v{vO}, v{vO+2}
    v_add_u32 v{vO+3}, v{vO}, v{vO+3}
    ds_write_b128 v7, {vr(vO,4)} offset:{L_OFFS}
    s_waitcnt lgkmcnt(0)""")
    for i in range(4):
        o(f"ds_read_b32 v{vA+i}, v{vA+i} offset:{L_OFFS}")
    o(f"""s_cmp_lg_u32 s{sWave}, 0
    s_cbranch_scc1 L1_notab
    s_lshl_b32 s{sTab}, s2, 10""")
    for i in range(4):
        o(f"v_lshl_or_b32 v{vC+i}, v{vC+i}, 16, v{vO+i}")
    o(f"""buffer_store_dwordx4 {vr(vC,4)}, v7, {sr(WS,4)}, s{sTab} offen
    s_waitcnt vmcnt(3)
    s_branch L1_tabdone
    L1_notab:
    s_waitcnt vmcnt(2)
    L1_tabdone:""")
    for i in range(4):
        o(f"v_or_b32 v{vW_+i}, v{vW_+i}, v{vS+i}")
    o("s_waitcnt lgkmcnt(0)")
    for i in range(4):
        o(f"v_add_lshl_u32 v{vA+i}, v{vA+i}, v{vR+i}, 2")
    o(f"""s_mov_b64 exec, {sr(M0_,2)}
    ds_write_b32 v{vA}, v{vW_} offset:{L_SORT}
    ds_write_b32 v{vA+1}, v{vW_+1} offset:{L_SORT}
    s_mov_b64 exec, {sr(M1_,2)}
    ds_write_b32 v{vA+2}, v{vW_+2} offset:{L_SORT}
    ds_write_b32 v{vA+3}, v{vW_+3} offset:{L_SORT}
    s_mov_b64 exec, -1""")
    st()
    o("s_waitcnt vmcnt(0) lgkmcnt(0)")
    o("L1_out:\ns_barrier")
    st()
    o(f"""ds_read_b32 v10, v3 offset:{L_SORT}
    ds_read_b32 v14, v3 offset:{L_SORT+4096}
    ds_read_b32 v18, v3 offset:{L_SORT+8192}
    v_mul_u32_u24 v5, 12, v0
    s_add_u32 s4, s{sRec}, 12288
    s_add_u32 s5, s{sRec}, 24576""")
    for k in range(3):
        o(f"""s_waitcnt lgkmcnt(2)
        v_lshrrev_b32 v6, 20, v{10+4*k}
        v_lshlrev_b32 v6, 3, v6
        ds_read_b64 {vr(8+4*k,2)}, v6 offset:{L_EA}""")
    for k, s in enumerate((sRec, 4, 5)):
        o(f"""s_waitcnt lgkmcnt({2-k})
        buffer_store_dwordx3 {vr(8+4*k,3)}, v5, {sr(WS,4)}, s{s} offen""")
    o(f"""s_cmp_lg_u32 s{sWave}, 0
    s_cbranch_scc1 L1_fin
    ds_read_b32 v22, v3 offset:{L_SORT+12288}
    s_add_u32 s4, s{sRec}, 36864
    s_waitcnt lgkmcnt(0)
    v_lshrrev_b32 v6, 20, v22
    v_lshlrev_b32 v6, 3, v6
    ds_read_b64 v[20:21], v6 offset:{L_EA}
    s_waitcnt lgkmcnt(0)
    buffer_store_dwordx3 v[20:22], v5, {sr(WS,4)}, s4 offen
    L1_fin:""")
    if OPT["stamp"]:
        st()
        o("s_waitcnt vmcnt(0)")
        st()
        st.flush(WS, sWave, 30)
    o("L1_end:\ns_endpgm")
    vW, vX, vAcc = 8, 40, 56
    o(f"""L1_tab:
    s_cmp_eq_u32 s{sWave}, 13
    s_cbranch_scc1 L1_idle
    s_sub_u32 s{sRt}, s{sWave}, 14
    s_waitcnt lgkmcnt(0)""")
    xw_issue(o, vW, vX, 2, 5, WM, 0, XS, sXo, sRt)
    o(f"""s_lshl_b32 s{sLw}, s{sRt}, 13
    s_add_u32 s{sLw}, s{sLw}, {L_W}
    s_mov_b32 s{sSelE}, 0x05040100
    s_mov_b32 s{sSelO}, 0x07060302
    s_barrier
    s_barrier
    s_waitcnt vmcnt(0)""")
    xw_compute(o, vW, vX, vAcc, 2, 5, sLw, sSelE, sSelO)
    o(f"""v_lshrrev_b32 v5, 5, v2
    v_lshlrev_b32 v5, 9, v5
    v_and_b32 v6, 31, v2
    v_lshl_add_u32 v5, v6, 2, v5
    s_lshl_b32 s4, s{sRt}, 12
    s_add_u32 s4, s4, s{sXo}
    s_add_u32 s4, s4, {WS_AT}""")
    for q in range(16):
        o(f"""v_cvt_pk_bf16_f32 v{vW+q}, v{vAcc+q}, v{vAcc+16+q}
        buffer_store_dword v{vW+q}, v5, {sr(ATS,4)}, s4 offen offset:{row_of(q)*128}""")
    o("""s_branch L1_out
    L1_idle:
    s_waitcnt lgkmcnt(0)
    s_barrier
    s_barrier
    s_branch L1_out""")
    return o, lds, 88, 80


def gen_k2():
    o = Asm()
    SLOTS, NGMAX, RS = 272, 472, 272
    L_EA = 0
    L_DENSE = L_EA + 16 * SLOTS * 8
    L_DESC = L_DENSE + NGMAX * 32
    L_HIST = L_DESC + NGMAX * 4
    L_EAZ = L_HIST + 256
    L_FLAG = L_EAZ + 8
    L_AGG = L_EAZ + 16
    L_WU = L_AGG + 50 * RS
    L_BT = L_WU + 16384
    L_STG = L_BT + 50 * RS
    STG = 4192
    L_LIST = L_STG + 4096
    LSTR = 528
    L_W2 = L_LIST + 32768
    lds = L_STG + 16 * STG
    assert lds <= 163840 and L_W2 + 16384 <= lds and L_AGG % 16 == 0 and L_AGG + 128 < 65536
    NULLW = (L_EAZ << 16) | 0xFFFF
    WS, AT, XS, WM, WU, OUT = 16, 20, 24, 28, 32, 36
    sWave, sB, sXo, sSelE, sSelO, sRun, sK, sStr, s128, sRedo = 6, 7, 8, 9, 10, 11, 12, 13, 14, 15
    sC = 40
    sMask = 44
    sBad = 60
    st = Stamp(o, 64, 1)
    o("s_cmp_ge_u32 s2, 256\ns_cbranch_scc1 L2_end")
    st()
    o(f"""s_load_dwordx2 {sr(WS,2)}, s[0:1], 64
    s_load_dwordx2 {sr(AT,2)}, s[0:1], 64
    s_load_dwordx2 {sr(XS,2)}, s[0:1], 0
    s_load_dwordx2 {sr(WM,2)}, s[0:1], 32
    s_load_dwordx2 {sr(WU,2)}, s[0:1], 40
    s_load_dwordx2 {sr(OUT,2)}, s[0:1], 48
    v_lshrrev_b32 v1, 6, v0
    v_and_b32 v2, 63, v0
    v_readfirstlane_b32 s{sWave}, v1
    s_and_b32 s{sB}, s2, 7
    s_lshl_b32 s{sB}, s{sB}, 5
    s_lshr_b32 s4, s2, 3
    s_add_u32 s{sB}, s{sB}, s4
    s_mov_b32 s{WS+2}, {WS_END}
    s_mov_b32 s{WS+3}, 0x20000
    v_lshrrev_b32 v3, 2, v0
    v_lshlrev_b32 v4, 10, v3
    s_lshl_b32 s4, s{sB}, 2
    s_mov_b32 s{AT+2}, {AT_BYTES + 3168}
    s_mov_b32 s{AT+3}, 0x20000
    s_mov_b32 s{XS+2}, {N*128}
    s_mov_b32 s{XS+3}, 0x20000
    s_mov_b32 s{WM+2}, {132*128}
    s_mov_b32 s{WM+3}, 0x20000
    s_mov_b32 s{WU+2}, {128*128}
    s_mov_b32 s{WU+3}, 0x20000
    s_mov_b32 s{OUT+3}, 0x20000
    s_mul_i32 s{sXo}, s{sB}, {NPB*128}
    s_add_u32 s{OUT+2}, s{sXo}, {NPB*128}
    s_min_u32 s{OUT+2}, s{OUT+2}, {N*128}
    v_lshlrev_b32 v5, 4, v0
    v_and_b32 v6, 31, v0
    v_lshlrev_b32 v6, 1, v6
    s_movk_i32 s5, {128*128}
    s_waitcnt lgkmcnt(0)""")
    vTab, vWU4, vW3 = 7, 8, 12
    o(f"""buffer_load_dword v{vTab}, v4, {sr(WS,4)}, s4 offen
    buffer_load_dwordx4 {vr(vWU4,4)}, v5, {sr(WU,4)}, 0 offen""")
    for t in range(2):
        for k in range(4):
            o(f"buffer_load_ushort v{vW3+4*t+k}, v6, {sr(WM,4)}, s5 offen offset:{k*128+t*64}")
    o(f"""s_add_u32 s{AT}, s{AT}, {WS_AT - 3168}
    s_addc_u32 s{AT+1}, s{AT+1}, 0""")
    vBW, vBX_, vBAcc = 56, 88, 24
    o(f"s_cmp_ge_u32 s{sWave}, 2\ns_cbranch_scc1 L2_nob1")
    xw_issue(o, vBW, vBX_, 2, 20, WM, 8192, XS, sXo, sWave)
    o("L2_nob1:")
    o(f"""v_mov_b32 v20, {hex(NULLW)}
    v_mov_b32 v21, v20
    v_mov_b32 v22, v20
    v_mov_b32 v23, v20
    v_add_u32 v24, {L_LIST}, v5
    ds_write_b128 v24, v[20:23]
    ds_write_b128 v24, v[20:23] offset:16384
    v_cmp_gt_u32 vcc, {NGMAX*2}, v0
    v_lshlrev_b32 v25, 2, v0
    v_mov_b32 v26, {49*RS}
    s_mov_b64 exec, vcc
    ds_write_b128 v5, v[20:23] offset:{L_DENSE}
    s_mov_b64 exec, -1
    v_cmp_gt_u32 vcc, {NGMAX}, v0
    s_movk_i32 s4, {NGMAX+68}
    v_cmp_gt_u32 s[44:45], s4, v0
    s_nop 0
    v_cndmask_b32 v26, 0, v26, vcc
    s_mov_b64 exec, s[44:45]
    ds_write_b32 v25, v26 offset:{L_DESC}
    s_mov_b64 exec, -1""")
    vQ, vWb, vRem, vGa = 20, 21, 22, 23
    o(f"""v_and_b32 v{vQ}, 3, v0
    s_mov_b32 s4, {RECB}
    v_mul_lo_u32 v{vWb}, v3, s4
    s_mov_b32 s{sSelE}, 0x05040100
    s_mov_b32 s{sSelO}, 0x07060302
    s_movk_i32 s{sStr}, {LSTR}
    s_movk_i32 s{s128}, 128
    s_mov_b32 s{sRedo}, 0
    s_mul_i32 s{sRun}, s{sWave}, {SLOTS}
    s_mov_b32 s5, {WS_REC}""")
    for i in range(4):
        o(f"s_movk_i32 s{sC+i}, {3168 - 1056*i}")
    o(f"""s_waitcnt lgkmcnt(0)
    s_barrier
    s_cmp_ge_u32 s{sWave}, 2
    s_cbranch_scc1 L2_w9
    s_waitcnt vmcnt(21)
    s_branch L2_wd
    L2_w9:
    s_waitcnt vmcnt(9)
    L2_wd:""")
    st()
    vRec = 24
    o(f"""v_and_b32 v{vGa}, 0xffff, v{vTab}
    v_lshrrev_b32 v{vTab}, 16, v{vTab}
    v_add_u32 v{vGa}, v{vGa}, v{vQ}
    v_sub_u32 v{vRem}, v{vTab}, v{vQ}
    v_mad_u32_u24 v{vGa}, v{vGa}, 12, v{vWb}""")
    for r in range(8):
        o(f"v_cmp_lt_i32 {sr(sMask+2*r,2)}, {4*r}, v{vRem}")
    o(f"v_cmp_lt_u32 {sr(sBad,2)}, 32, v{vTab}")
    for r in range(8):
        o(f"""s_mov_b64 exec, {sr(sMask+2*r,2)}
        buffer_load_dwordx3 {vr(vRec+4*r,3)}, v{vGa}, {sr(WS,4)}, s5 offen offset:{48*r}""")
    o("s_mov_b64 exec, -1")
    for r in range(8):
        o(f"""v_mbcnt_lo_u32_b32 v{vRec+4*r+3}, s{sMask+2*r}, 0
        v_mbcnt_hi_u32_b32 v{vRec+4*r+3}, s{sMask+2*r+1}, v{vRec+4*r+3}
        v_add_lshl_u32 v{vRec+4*r+3}, v{vRec+4*r+3}, s{sRun}, 3
        s_bcnt1_i32_b64 s4, {sr(sMask+2*r,2)}
        s_add_u32 s{sRun}, s{sRun}, s4""")
    o(f"""s_mul_i32 s4, s{sWave}, {SLOTS}
    s_add_u32 s4, s4, {SLOTS}
    s_cmp_gt_u32 s{sRun}, s4
    s_cselect_b32 s4, 1, 0
    s_or_b32 s{sBad}, s{sBad}, s4
    s_or_b32 s{sBad}, s{sBad}, s{sBad+1}
    s_cbranch_scc0 L2_ok1
    v_mov_b32 v20, 0
    v_mov_b32 v21, 1
    ds_write_b32 v20, v21 offset:{L_FLAG}
    L2_ok1:
    s_waitcnt vmcnt(8)""")
    o(f"""v_lshrrev_b32 v20, 3, v0
    v_lshlrev_b32 v20, 7, v20
    v_and_b32 v21, 7, v0
    v_lshl_add_u32 v20, v21, 3, v20
    v_add_u32 v20, {L_WU}, v20
    v_perm_b32 v4, v{vWU4+1}, v{vWU4}, s{sSelE}
    v_perm_b32 v5, v{vWU4+3}, v{vWU4+2}, s{sSelE}
    v_perm_b32 v6, v{vWU4+1}, v{vWU4}, s{sSelO}
    v_perm_b32 v7, v{vWU4+3}, v{vWU4+2}, s{sSelO}
    ds_write2_b64 v20, v[4:5], v[6:7] offset0:0 offset1:8""")
    Y0, Y1, T, F, ID = 8, 24, 40, 56, 72
    AX, BX0, BX1 = 80, 120, 124
    Nn, Da, Db, Dk, Rr, R0, R1, CK = 84, 86, 88, 90, 92, 94, 96, 98
    WD, GA = 100, 104
    SL, DR, DH, FA = 108, 109, 110, 112
    pW, pS, pR, pH = 114, 115, 116, 117
    cV, cF, cT, cC = 118, 119, 4, 5
    o(f"s_mov_b32 s4, {NLOG2E}\nv_cmp_lt_u32 vcc, 31, v2")
    for i in range(8):
        o(f"v_lshlrev_b32 v{vW3+i}, 16, v{vW3+i}\nv_mul_f32 v{vW3+i}, s4, v{vW3+i}")
    for t, bx in enumerate((BX0, BX1)):
        for pr in range(2):
            a = vW3 + 4 * t + 2 * pr
            o(f"""v_cvt_pk_bf16_f32 v8, v{a}, v{a+1}
            v_lshlrev_b32 v9, 16, v8
            v_and_b32 v10, 0xffff0000, v8
            v_sub_f32 v9, v{a}, v9
            v_sub_f32 v10, v{a+1}, v10
            v_cvt_pk_bf16_f32 v9, v9, v10
            v_cndmask_b32 v{bx+pr}, v8, v9, vcc""")
    o(f"s_cmp_ge_u32 s{sWave}, 2\ns_cbranch_scc1 L2_nob2")
    o(f"s_lshl_b32 s62, s{sWave}, 13\ns_add_u32 s62, s62, {L_W2}")
    bjob(o, vBW, vBX_, 2, 62, sSelE, sSelO, sWave, L_BT, L_AGG, RS)
    o("L2_nob2:")
    st()
    vRank, vLb = 8, 56
    o(f"v_mov_b32 v20, 1\nv_mov_b32 v21, {L_LIST}")
    for r in range(8):
        w = vRec + 4 * r
        o(f"""s_mov_b64 exec, {sr(sMask+2*r,2)}
        s_cbranch_execz L2_p1done
        s_waitcnt vmcnt({7-r})
        v_bfe_u32 v{vLb+r}, v{w+2}, 14, 6
        v_lshlrev_b32 v22, 2, v{vLb+r}
        ds_add_rtn_u32 v{vRank+r}, v22, v20 offset:{L_HIST}
        ds_write_b64 v{w+3}, {vr(w,2)}
        v_and_b32 v{w+2}, 0x3fff, v{w+2}
        v_lshl_or_b32 v{w+2}, v{w+3}, 16, v{w+2}
        v_mad_u32_u24 v{vLb+r}, v{vLb+r}, s{sStr}, v21""")
    o("L2_p1done:\ns_waitcnt lgkmcnt(0)")
    for r in range(8):
        w = vRec + 4 * r
        o(f"""s_mov_b64 exec, {sr(sMask+2*r,2)}
        s_cbranch_execz L2_p2done
        v_min_u32 v{vRank+r}, 0x83, v{vRank+r}
        v_lshl_add_u32 v{vLb+r}, v{vRank+r}, 2, v{vLb+r}
        ds_write_b32 v{vLb+r}, v{w+2}""")
    o(f"""L2_p2done:
    s_mov_b64 exec, -1
    v_lshlrev_b32 v8, 2, v2
    v_mov_b32 v9, 0
    v_lshrrev_b32 v10, 4, v0
    v_lshlrev_b32 v11, 2, v10
    v_mul_u32_u24 v10, {RS}, v10
    v_and_b32 v12, 15, v0
    v_lshl_add_u32 v10, v12, 4, v10
    s_lshl_b32 s4, s{sWave}, 5
    v_mad_u32_u24 v13, v2, s{sStr}, v21
    v_add_u32 v13, s4, v13
    v_mul_u32_u24 v14, {RS}, v2
    s_waitcnt lgkmcnt(0)
    s_barrier""")
    st()
    o(f"""ds_read_b32 v15, v8 offset:{L_HIST}
    ds_read_b32 v16, v9 offset:{L_FLAG}
    ds_read_b128 v[24:27], v13
    ds_read_b128 v[28:31], v13 offset:16
    ds_read_b32 v17, v11 offset:{L_HIST}
    ds_read_b128 v[32:35], v10 offset:{L_AGG}
    s_waitcnt lgkmcnt(4)
    v_add_u32 v18, 7, v15
    v_lshrrev_b32 v18, 3, v18
    v_mov_b32 v19, v18
    v_cmp_lt_u32 {sr(sBad,2)}, s{s128}, v15
    v_readfirstlane_b32 s4, v16""")
    dpp_scan(o, 19)
    o(f"""v_cmp_lt_u32 vcc, s{sWave}, v18
    v_sub_u32 v18, v19, v18
    v_readlane_b32 s{sK}, v19, 63
    v_add_lshl_u32 v18, v18, s{sWave}, 2
    v_lshlrev_b32 v19, 3, v18
    s_or_b32 s4, s4, s{sBad}
    s_or_b32 s4, s4, s{sBad+1}
    s_cbranch_scc1 L2_slow
    s_cmp_gt_u32 s{sK}, {NGMAX}
    s_cbranch_scc1 L2_slow
    s_waitcnt lgkmcnt(0)
    s_mov_b64 exec, vcc
    ds_write_b128 v19, v[24:27] offset:{L_DENSE}
    ds_write_b128 v19, v[28:31] offset:{L_DENSE+16}
    ds_write_b32 v18, v14 offset:{L_DESC}
    s_mov_b64 exec, -1
    v_cmp_gt_u32 vcc, {50*16}, v0
    v_sub_u32 v17, 0, v17
    v_and_b32 v17, 7, v17
    v_cvt_f32_u32 v17, v17
    v_mul_f32 v32, -v17, v32
    v_mul_f32 v33, -v17, v33
    v_mul_f32 v34, -v17, v34
    v_mul_f32 v35, -v17, v35
    FXINIT
    s_mov_b64 exec, vcc
    ds_write_b128 v10, v[32:35] offset:{L_AGG}
    s_mov_b64 exec, -1""")
    o(f"""s_add_u32 s{sK}, s{sK}, 3
    s_lshr_b32 s{sK}, s{sK}, 2
    s_add_u32 s{sK}, s{sK}, 15
    s_sub_u32 s{sK}, s{sK}, s{sWave}
    s_lshr_b32 s{sK}, s{sK}, 4""")
    o(f"""s_mul_i32 s4, s{sWave}, {STG}
    s_add_u32 s4, s4, {L_STG}
    s_mov_b32 m0, s4
    v_lshrrev_b32 v8, 3, v2
    v_lshlrev_b32 v{pW}, 4, v8
    s_lshl_b32 s5, s{sWave}, 7
    v_add_u32 v{pW}, s5, v{pW}
    v_bfe_u32 v9, v2, 4, 1
    v_and_b32 v10, 7, v2
    v_xor_b32 v9, v9, v10
    v_lshlrev_b32 v{cV}, 4, v9
    v_bfe_u32 v9, v2, 2, 1
    v_and_b32 v10, 1, v2
    v_lshl_add_u32 v9, v9, 1, v10
    v_bfe_u32 v11, v2, 1, 1
    v_bfe_u32 v12, v2, 3, 2
    v_lshl_add_u32 v11, v12, 1, v11
    v_lshl_add_u32 v12, v9, 3, v11
    v_lshl_add_u32 v{pS}, v12, 2, s5
    v_and_b32 v12, 3, v11
    v_mul_u32_u24 v12, 1056, v12
    v_lshrrev_b32 v13, 2, v11
    v_lshl_add_u32 v13, v9, 1, v13
    v_lshl_add_u32 v12, v13, 7, v12
    v_lshrrev_b32 v13, 5, v2
    v_xor_b32 v14, v13, v10
    v_lshl_add_u32 v12, v14, 4, v12
    v_add_u32 v{cF}, s4, v12
    s_lshl_b32 s5, s{sWave}, 4
    v_bfe_u32 v12, v2, 2, 2
    v_lshl_add_u32 v{pR}, v12, 2, s5
    v_lshl_add_u32 v{pH}, v13, 3, s5
    v_bfe_u32 v12, v2, 4, 1
    v_lshlrev_b32 v12, 5, v12
    v_lshl_add_u32 v12, v13, 7, v12
    v_and_b32 v14, 3, v2
    v_lshl_add_u32 v12, v14, 3, v12
    v_add_u32 v{cT}, {L_BT}, v12
    v_and_b32 v12, 31, v2
    v_lshlrev_b32 v{cC}, 2, v12
    v_mov_b32 v15, 0x3f80
    v_lshlrev_b32 v14, 4, v10
    v_lshlrev_b32 v15, v14, v15
    v_cmp_gt_u32 vcc, 2, v9
    v_lshlrev_b32 v13, 3, v13
    v_sub_u32 v12, v12, v13
    v_cndmask_b32 v{AX+2}, 0, v15, vcc
    v_cndmask_b32 v{AX+3}, v15, 0, vcc
    v_lshrrev_b32 v12, 1, v12""")
    for sp in range(2):
        for i in range(4):
            o(f"""v_cmp_eq_u32 vcc, {8*sp+i}, v12
            s_nop 1
            v_cndmask_b32 v{ID+4*sp+i}, 0, v15, vcc""")
    o(f"""v_mov_b32 v{R1}, 0
    v_mov_b32 v{R1+1}, 0
    v_mov_b32 v{CK}, 0
    v_mov_b32 v{CK+1}, 0
    v_mov_b32 v{FA}, v{cC}
    v_mov_b32 v{FA+1}, v{cC}
    s_waitcnt lgkmcnt(0)
    s_barrier""")
    st()
    o(f"s_cmp_eq_u32 s{sK}, 0\ns_cbranch_scc1 L2_post")

    def gaddr(src):
        return [f"v_mad_u32_u16 v{GA+i}, v{src+i}, s{s128}, v{cV}" for i in range(4)]

    def dma():
        return [f"buffer_load_dwordx4 v{GA+i}, {sr(AT,4)}, s{sC+i} offen offset:{1056*i} lds" for i in range(4)]

    def frag_reads():
        return [f"ds_read_b64 {vr(AX,2)}, v{SL}",
                f"ds_read_b64_tr_b16 {vr(BX0+2,2)}, v{DR}",
                f"ds_read_b128 {vr(F,4)}, v{cF}",
                f"ds_read_b128 {vr(F+4,4)}, v{cF} offset:32",
                f"ds_read_b64_tr_b16 {vr(BX1+2,2)}, v{DR} offset:64",
                f"ds_read_b128 {vr(F+8,4)}, v{cF} offset:64",
                f"ds_read_b128 {vr(F+12,4)}, v{cF} offset:96"]

    def idx_reads(kw, ks, kh):
        return [f"ds_read_b128 {vr(WD,4)}, v{pW} offset:{L_DENSE + kw*2048}",
                f"ds_read_u16 v{SL}, v{pS} offset:{L_DENSE + ks*2048 + 2}",
                f"ds_read_b32 v{DR}, v{pR} offset:{L_DESC + ks*256}",
                f"ds_read_b64 {vr(DH,2)}, v{pH} offset:{L_DESC + kh*256}"]

    def mf(t):
        y, bx = (Y0, BX0) if t == 0 else (Y1, BX1)
        return [mfma32(y, AX, bx, "0"), mfma32(y, F + 8 * t, ID), mfma32(y, F + 8 * t + 4, ID + 4)]

    def PF(d, a, b, c):
        return f"v_pk_fma_f32 {vr(d,2)}, {vr(a,2)}, {vr(b,2)}, {vr(c,2)}"

    def chain(Y, dfin, res, filler):
        r = [f"v_pk_add_f32 {vr(Da,2)}, {vr(T,2)}, 1.0 op_sel_hi:[1,0]"]
        cur = Da
        for i in range(1, 8):
            nxt = dfin if i == 7 else (Db if cur == Da else Da)
            src = Y if i == 1 else Nn
            r += [PF(Nn, src, T + 2 * i, src), PF(nxt, cur, T + 2 * i, cur), PF(Nn, Y + 2 * i, cur, Nn)]
            cur = nxt
        r += [f"v_rcp_f32 v{Rr}, v{dfin}", f"v_rcp_f32 v{Rr+1}, v{dfin+1}", filler,
              f"v_pk_mul_f32 {vr(res,2)}, {vr(Nn,2)}, {vr(Rr,2)}"]
        if OPT["fx"]:
            r += [f"v_mul_f32 v{res}, 0x47800000, v{res}", f"v_mul_f32 v{res+1}, 0x47800000, v{res+1}",
                  f"v_cvt_i32_f32 v{res}, v{res}", f"v_cvt_i32_f32 v{res+1}, v{res+1}"]
        return r

    def exps(Y):
        return [f"v_exp_f32 v{T+i}, v{Y+i}" for i in range(16)]

    for x in idx_reads(0, 0, 0)[:3]:
        o(x)
    o(f"ds_read_b128 {vr(T,4)}, v{pW} offset:{L_DENSE + 2048}\ns_waitcnt lgkmcnt(1)")
    for x in gaddr(WD) + dma():
        o(x)
    o(f"v_add_u32 v{DR}, v{DR}, v{cT}\ns_waitcnt lgkmcnt(0)")
    for x in gaddr(T):
        o(x)
    o("s_waitcnt vmcnt(0)")
    for x in frag_reads():
        o(x)
    o(f"s_waitcnt lgkmcnt(0)\ns_cmp_lt_u32 s{sK}, 2\ns_cbranch_scc1 L2_nog1")
    for x in dma():
        o(x)
    o("L2_nog1:")
    for x in idx_reads(2, 1, 0) + mf(0):
        o(x)
    o("s_nop 12")
    st()
    o(".p2align 6\nL2_loop:")
    m, e = mf(1), exps(Y0)
    for i in range(3):
        o(m[i])
        for x in e[3 * i:3 * i + 3]:
            o(x)
    o(e[9])
    o(f"""s_waitcnt vmcnt(0) lgkmcnt(0)
    v_add_u32 v{DR}, v{DR}, v{cT}
    ds_add_f32 v{FA}, v{R1} offset:{L_AGG+128}
    ds_add_f32 v{FA+1}, v{R1+1} offset:{L_AGG+128}""")
    for x in frag_reads():
        o(x)
    for x in e[10:]:
        o(x)
    o(f"v_add_u32 v{FA}, v{DH}, v{cC}\nv_add_u32 v{FA+1}, v{DH+1}, v{cC}")
    for x in gaddr(WD):
        o(x)
    for x in chain(Y0, Dk, R0, "s_waitcnt lgkmcnt(0)"):
        o(x)
    m, e = mf(0), exps(Y1)
    for i in range(3):
        o(m[i])
        for x in e[3 * i:3 * i + 3]:
            o(x)
    o(e[9])
    o(f"""ds_add_f32 v{FA}, v{R0} offset:{L_AGG}
    ds_add_f32 v{FA+1}, v{R0+1} offset:{L_AGG}
    s_cmp_lt_u32 s{sK}, 3
    s_cbranch_scc1 L2_nog""")
    for x in dma():
        o(x)
    o("L2_nog:")
    for x in idx_reads(3, 2, 1):
        o(x)
    o(f"s_sub_u32 s{sK}, s{sK}, 1\ns_cmp_lg_u32 s{sK}, 0")
    for x in e[10:]:
        o(x)
    o(f"""v_add_u32 v{pW}, 0x800, v{pW}
    v_add_u32 v{pS}, 0x800, v{pS}
    v_add_u32 v{pR}, 0x100, v{pR}
    v_add_u32 v{pH}, 0x100, v{pH}""")
    for x in chain(Y1, Db, R1, PF(CK, Dk, Db, CK)):
        o(x)
    o(f"""s_cbranch_scc1 L2_loop
    ds_add_f32 v{FA}, v{R1} offset:{L_AGG+128}
    ds_add_f32 v{FA+1}, v{R1+1} offset:{L_AGG+128}
    s_mov_b32 s4, {f32(2.0**120)}
    v_add_f32 v{CK}, v{CK}, v{CK+1}
    v_cmp_ngt_f32 vcc, s4, v{CK}
    v_mov_b32 v8, 0
    v_mov_b32 v9, 1
    s_mov_b64 exec, vcc
    ds_write_b32 v8, v9 offset:{L_FLAG}
    s_mov_b64 exec, -1""")
    eX, eW, eA, eAcc, eG = 8, 16, 48, 56, 64
    o("L2_post:")
    st()
    o(f"""s_cmp_ge_u32 s{sWave}, 8
    s_cbranch_scc1 L2_ewait
    s_lshr_b32 s4, s{sWave}, 1
    s_and_b32 s5, s{sWave}, 1
    v_and_b32 v80, 15, v2
    v_lshrrev_b32 v81, 4, v2
    s_lshl_b32 s62, s4, 4
    v_add_u32 v82, s62, v80
    v_lshlrev_b32 v83, 7, v82
    v_lshl_add_u32 v83, v81, 4, v83
    s_nop 7
    buffer_load_dwordx4 {vr(eX,4)}, v83, {sr(XS,4)}, s{sXo} offen
    buffer_load_dwordx4 {vr(eX+4,4)}, v83, {sr(XS,4)}, s{sXo} offen offset:64
    v_lshlrev_b32 v84, 10, v81
    v_bfe_u32 v85, v2, 2, 2
    v_lshl_add_u32 v84, v85, 7, v84
    v_and_b32 v85, 3, v2
    v_lshl_add_u32 v84, v85, 3, v84
    s_lshl_b32 s63, s5, 5
    s_add_u32 s63, s63, {L_WU}
    v_add_u32 v84, s63, v84
    s_waitcnt lgkmcnt(0)""")
    for t in range(2):
        for s in range(4):
            for u in range(2):
                o(f"ds_read_b64_tr_b16 {vr(eW + 16*t + 4*s + 2*u, 2)}, v84 offset:{s*4096 + u*512 + t*64}")
        if t == 0:
            o("s_waitcnt lgkmcnt(0)")
    o(f"""v_mul_u32_u24 v85, {RS}, v82
    v_lshl_add_u32 v85, v81, 5, v85
    v_cmp_gt_u32 {sr(sBad,2)}, {NPB}, v82
    v_lshl_add_u32 v86, v81, 2, s62
    v_lshlrev_b32 v86, 7, v86
    v_lshl_add_u32 v86, v80, 2, v86
    s_lshl_b32 s63, s5, 6
    s_add_u32 s63, s63, s{sXo}
    s_waitcnt vmcnt(0) lgkmcnt(0)""")
    for t in range(2):
        for s in range(2):
            o(mfma16(eAcc + 4 * t, eX + 4 * s, eW + 16 * t + 4 * s, "0" if s == 0 else None))
    o("s_barrier")
    st()
    for s in range(2):
        for u in range(2):
            o(f"ds_read_b128 {vr(eG + 8*s + 4*u, 4)}, v85 offset:{L_AGG + s*128 + u*16}")
    o(f"s_mov_b32 s4, {NLN2}\nv_mov_b32 v87, 0")
    for s in range(2):
        o(f"s_waitcnt lgkmcnt({2 - 2*s})")
        if OPT["fx"]:
            for i in range(8):
                o(f"v_cvt_f32_i32 v{eG+8*s+i}, v{eG+8*s+i}\nv_mul_f32 v{eG+8*s+i}, 0x37800000, v{eG+8*s+i}")
        for i in range(8):
            o(f"v_mul_f32 v{eG+8*s+i}, s4, v{eG+8*s+i}")
        for i in range(4):
            o(f"v_cvt_pk_bf16_f32 v{eA+4*s+i}, v{eG+8*s+2*i}, v{eG+8*s+2*i+1}")
    o("s_nop 1")
    for s in range(2):
        for t in range(2):
            o(mfma16(eAcc + 4 * t, eA + 4 * s, eW + 16 * t + 8 + 4 * s))
    for i in range(16):
        o(f"v_fma_f32 v87, 0, v{eG+i}, v87")
    o(f"s_mov_b32 s4, {NLOG2E}")
    for i in range(8):
        o(f"v_mul_f32 v{eG+i}, s4, v{eAcc+i}")
    for i in range(8):
        o(f"v_exp_f32 v{eG+i}, v{eG+i}")
    for i in range(8):
        o(f"v_add_f32 v{eG+i}, 1.0, v{eG+i}")
    for i in range(8):
        o(f"v_rcp_f32 v{eG+i}, v{eG+i}")
    for i in range(8):
        o(f"v_mul_f32 v{eG+i}, v{eAcc+i}, v{eG+i}")
    for r in range(4):
        o(f"""v_cvt_pk_bf16_f32 v{eA+r}, v{eG+r}, v{eG+4+r}
        buffer_store_dword v{eA+r}, v86, {sr(OUT,4)}, s63 offen offset:{r*128}""")
    o(f"""v_cmp_u_f32 vcc, v87, v87
    v_mov_b32 v8, 0
    v_mov_b32 v9, 1
    s_and_b64 exec, vcc, {sr(sBad,2)}
    ds_write_b32 v8, v9 offset:{L_FLAG}
    s_mov_b64 exec, -1
    s_branch L2_chk
    L2_ewait:
    s_waitcnt lgkmcnt(0)
    s_barrier""")
    if OPT["stamp"]:
        o(f"s_memrealtime {sr(st.sb + 2 * (st.n - 1), 2)}")
    o(f"""v_mov_b32 v8, 0
    L2_chk:
    s_waitcnt lgkmcnt(0)
    s_barrier
    ds_read_b32 v9, v8 offset:{L_FLAG}
    s_waitcnt lgkmcnt(0)
    v_readfirstlane_b32 s4, v9
    s_cmp_gt_u32 s4, s{sRedo}
    s_cbranch_scc1 L2_slow""")
    if OPT["stamp"]:
        st()
        o("s_waitcnt vmcnt(0)")
        st()
        st.flush(WS, sWave, 30)
    o("L2_end:\ns_endpgm")
    o(f"""L2_slow:
    s_mov_b32 s{sRedo}, 1
    s_waitcnt vmcnt(0) lgkmcnt(0)
    s_barrier
    v_lshrrev_b32 v10, 4, v0
    v_mul_u32_u24 v10, {RS}, v10
    v_and_b32 v12, 15, v0
    v_lshl_add_u32 v10, v12, 4, v10
    v_mov_b32 v12, 0
    v_mov_b32 v13, 0
    v_mov_b32 v14, 0
    v_mov_b32 v15, 0
    v_cmp_gt_u32 vcc, {50*16}, v0
    v_lshlrev_b32 v6, 1, v2
    s_movk_i32 s5, {128*128}
    s_mov_b64 exec, vcc
    ds_write_b128 v10, v[12:15] offset:{L_AGG}
    s_mov_b64 exec, -1""")
    for k in range(4):
        o(f"buffer_load_ushort v{16+k}, v6, {sr(WM,4)}, s5 offen offset:{k*128}")
    o(f"s_mov_b32 s4, {NLOG2E}\ns_waitcnt vmcnt(0) lgkmcnt(0)\ns_barrier")
    for k in range(4):
        o(f"v_lshlrev_b32 v{16+k}, 16, v{16+k}\nv_mul_f32 v{16+k}, s4, v{16+k}")
    o(f"""v_add_u32 v7, {L_BT}, v6
    v_lshlrev_b32 v8, 2, v2
    s_mov_b32 s44, s{sWave}
    s_movk_i32 s49, {RS}
    L2_sseg:
    s_lshl_b32 s45, s44, 8
    s_add_u32 s45, s45, s{sB}
    s_lshl_b32 s45, s45, 2
    buffer_load_dword v20, v12, {sr(WS,4)}, s45 offen
    s_waitcnt vmcnt(0)
    v_readfirstlane_b32 s46, v20
    s_lshr_b32 s47, s46, 16
    s_and_b32 s46, s46, 0xffff
    s_mul_i32 s46, s46, 12
    s_mul_i32 s48, s44, {RECB}
    s_add_u32 s46, s46, s48
    s_add_u32 s46, s46, {WS_REC}
    s_cmp_eq_u32 s47, 0
    s_cbranch_scc1 L2_snext
    L2_sedge:
    buffer_load_dwordx3 v[20:22], v12, {sr(WS,4)}, s46 offen
    s_waitcnt vmcnt(0)
    v_and_b32 v23, 0x3fff, v22
    v_lshl_add_u32 v23, v23, 7, v6
    buffer_load_ushort v23, v23, {sr(AT,4)}, s{sC} offen
    v_bfe_u32 v22, v22, 14, 6
    v_mad_u32_u24 v24, v22, s49, v7
    ds_read_u16 v25, v24
    ds_read_u16 v26, v24 offset:128
    v_mad_u32_u24 v24, v22, s49, v8
    v_lshlrev_b32 v27, 16, v20
    v_and_b32 v20, 0xffff0000, v20
    v_lshlrev_b32 v28, 16, v21
    v_and_b32 v21, 0xffff0000, v21
    v_mul_f32 v27, v27, v16
    v_fmac_f32 v27, v20, v17
    v_fmac_f32 v27, v28, v18
    v_fmac_f32 v27, v21, v19
    s_waitcnt vmcnt(0) lgkmcnt(0)
    v_lshlrev_b32 v23, 16, v23
    v_lshlrev_b32 v25, 16, v25
    v_lshlrev_b32 v26, 16, v26
    v_add_f32 v27, v27, v26
    v_add_f32 v27, v27, v25
    v_add_f32 v27, v27, v23
    v_exp_f32 v28, v27
    s_add_u32 s46, s46, 12
    v_add_f32 v28, 1.0, v28
    v_rcp_f32 v28, v28
    s_sub_u32 s47, s47, 1
    v_mul_f32 v28, v27, v28
    ds_add_f32 v24, v28 offset:{L_AGG}
    s_cmp_lg_u32 s47, 0
    s_cbranch_scc1 L2_sedge
    L2_snext:
    s_add_u32 s44, s44, 16
    s_cmp_lt_u32 s44, 256
    s_cbranch_scc1 L2_sseg
    s_branch L2_post""")
    return o, lds, 128, 96


def bjob(o, vBW, vBX, vlane, sLds, sSelE, sSelO, sWave, L_BT, L_AGG, RS):
    vt = 4
    acc = 8
    o(f"""v_lshrrev_b32 v{vt}, 3, v{vlane}
    v_lshlrev_b32 v{vt}, 7, v{vt}
    v_and_b32 v{vt+1}, 7, v{vlane}
    v_lshl_add_u32 v{vt}, v{vt+1}, 3, v{vt}
    v_add_u32 v{vt}, s{sLds}, v{vt}""")
    for i in range(8):
        w = vBW + 4 * i
        p = acc + 4 * (i % 4)
        if i == 4:
            o("s_waitcnt lgkmcnt(0)")
        o(f"""v_perm_b32 v{p}, v{w+1}, v{w}, s{sSelE}
        v_perm_b32 v{p+1}, v{w+3}, v{w+2}, s{sSelE}
        v_perm_b32 v{p+2}, v{w+1}, v{w}, s{sSelO}
        v_perm_b32 v{p+3}, v{w+3}, v{w+2}, s{sSelO}
        ds_write_b64 v{vt}, {vr(p,2)} offset:{i*1024}
        ds_write_b64 v{vt}, {vr(p+2,2)} offset:{i*1024+64}""")
    o(f"""v_lshrrev_b32 v{vt}, 5, v{vlane}
    v_lshlrev_b32 v{vt}, 10, v{vt}
    v_bfe_u32 v{vt+1}, v{vlane}, 2, 2
    v_lshl_add_u32 v{vt}, v{vt+1}, 7, v{vt}
    v_bfe_u32 v{vt+1}, v{vlane}, 4, 1
    v_lshl_add_u32 v{vt}, v{vt+1}, 5, v{vt}
    v_and_b32 v{vt+1}, 3, v{vlane}
    v_lshl_add_u32 v{vt}, v{vt+1}, 3, v{vt}
    v_add_u32 v{vt}, s{sLds}, v{vt}
    s_waitcnt lgkmcnt(0)""")
    for t in range(2):
        for s in range(4):
            for u in range(2):
                o(f"ds_read_b64_tr_b16 {vr(vBW + 16*t + 4*s + 2*u, 2)}, v{vt} offset:{s*2048 + u*512 + t*64}")
        o("s_waitcnt lgkmcnt(0)")
    accE, accO = acc, 104
    for t, a in enumerate((accE, accO)):
        for s in range(4):
            o(mfma32(a, vBX + 4 * s, vBW + 16 * t + 4 * s, "0" if s == 0 else None))
    o(f"""v_lshrrev_b32 v{vt}, 5, v{vlane}
    v_lshlrev_b32 v{vt}, 2, v{vt}
    s_lshl_b32 s4, s{sWave}, 5
    v_add_u32 v{vt+2}, s4, v{vt}
    v_mul_u32_u24 v{vt}, {RS}, v{vt+2}
    v_and_b32 v{vt+3}, 31, v{vlane}
    v_lshl_add_u32 v{vt+1}, v{vt+3}, 3, v{vt}
    v_lshl_add_u32 v{vt}, v{vt+3}, 2, v{vt}
    v_add_u32 v{vt}, {L_BT}, v{vt}
    s_mov_b32 s4, {NLOG2E}
    s_nop 7""")
    t0 = vBW
    for q in range(16):
        e, d = accE + q, accO + q
        b = t0 + 8 * (q % 4)
        if q and q % 4 == 0:
            o("s_waitcnt lgkmcnt(0)")
        o(f"""v_mul_f32 v{e}, s4, v{e}
        v_mul_f32 v{d}, s4, v{d}
        v_cmp_gt_u32 vcc, {50 - row_of(q)}, v{vt+2}
        v_exp_f32 v{b+2}, v{e}
        v_exp_f32 v{b+3}, v{d}
        v_cvt_pk_bf16_f32 v{b}, v{e}, v{d}
        v_add_f32 v{b+2}, 1.0, v{b+2}
        v_add_f32 v{b+3}, 1.0, v{b+3}
        v_rcp_f32 v{b+2}, v{b+2}
        v_rcp_f32 v{b+3}, v{b+3}
        v_lshlrev_b32 v{b+4}, 16, v{b}
        v_and_b32 v{b+5}, 0xffff0000, v{b}
        v_sub_f32 v{b+4}, v{e}, v{b+4}
        v_sub_f32 v{b+5}, v{d}, v{b+5}
        v_cvt_pk_bf16_f32 v{b+1}, v{b+4}, v{b+5}
        v_mul_f32 v{b+2}, v{e}, v{b+2}
        v_mul_f32 v{b+3}, v{d}, v{b+3}
        s_mov_b64 exec, vcc
        ds_write_b32 v{vt}, v{b} offset:{row_of(q)*RS}
        ds_write_b32 v{vt}, v{b+1} offset:{row_of(q)*RS+128}
        ds_write_b64 v{vt+1}, {vr(b+2,2)} offset:{L_AGG + row_of(q)*RS}
        s_mov_b64 exec, -1""")


def descriptor(name, vgpr, sgpr):
    return f""".section .rodata,"a"
.p2align 6
.amdhsa_kernel {name}
  .amdhsa_next_free_vgpr {vgpr}
  .amdhsa_next_free_sgpr {sgpr}
  .amdhsa_accum_offset {(vgpr + 3) // 4 * 4}
  .amdhsa_group_segment_fixed_size 0
  .amdhsa_kernarg_size 72
  .amdhsa_user_sgpr_count 2
  .amdhsa_user_sgpr_kernarg_segment_ptr 1
  .amdhsa_system_sgpr_workgroup_id_x 1
.end_amdhsa_kernel
"""


def main():
    k1, lds1, v1, s1 = gen_k1()
    k2, lds2, v2, s2 = gen_k2()
    n1, n2 = "mpnn_bin_kernel", "standalone__mpnn_edge_mlp__graph_kernel"
    out = f"""; MPNN edge MLP: launch 1 bins edges by destination bucket and builds A' = -log2e * x @ W1,
; @launch kernel={n1} grid=(256,1,1) block=(1024,1,1) lds={lds1}
; @launch kernel={n2} grid=(256,1,1) block=(1024,1,1) lds={lds2}
.amdgcn_target "amdgcn-amd-amdhsa--gfx950"
.text
"""
    for n, k in ((n1, k1), (n2, k2)):
        out += f".globl {n}\n.p2align 8\n.type {n},@function\n{n}:\n" + k.text()
    out += descriptor(n1, v1, s1) + descriptor(n2, v2, s2)
    if OPT["fx"]:
        out = out.replace("    FXINIT\n", "".join(f"    v_mul_f32 v{i}, 0x47800000, v{i}\n    v_cvt_i32_f32 v{i}, v{i}\n" for i in range(32, 36)))
        out = out.replace("ds_add_f32", "ds_add_u32")
    out = out.replace("    FXINIT\n", "")
    open(sys.argv[1], "w").write(out)


main()
```

```python
import sys
src, out, A, B = sys.argv[1:5]
s = open(src).read()
lines = s.split("\n")
L = [i for i, l in enumerate(lines) if l.startswith("; @launch")]
if "kernel=" not in lines[L[-1]]:
    lines[L[-1]] = lines[L[-1]].replace("@launch ", "@launch kernel=standalone__mpnn_edge_mlp__graph_kernel ")
lines.insert(L[-1] + 1, "; @launch kernel=diag_kernel grid=(1,1,1) block=(64,1,1) lds=0")
s = "\n".join(lines)
WS_STAMP = 32 << 20
o = ["s_cmp_lg_u32 s2, 0", "s_cbranch_scc1 LD_end", "s_load_dwordx2 s[8:9], s[0:1], 64", f"s_mov_b32 s10, {WS_STAMP + (4<<20)}", "s_mov_b32 s11, 0x20000",
     "v_lshlrev_b32 v1, 10, v0", "v_mov_b32 v2, 0", f"s_mov_b32 s4, {WS_STAMP}", "s_waitcnt lgkmcnt(0)",
     "buffer_load_dword v3, v2, s[8:11], s4 offen"]
def red(spec, v, sd):
    k, w, i, op = spec.split(",")
    r = []
    for q in range(4):
        r += [f"s_mov_b32 s4, {WS_STAMP + int(k)*(1<<20) + q*65536 + int(w)*64 + int(i)*4}", f"buffer_load_dword v{v+q}, v1, s[8:11], s4 offen"]
    r += ["s_waitcnt vmcnt(0)"]
    for q in range(4):
        r += [f"v_sub_u32 v{v+q}, v{v+q}, v3", f"v_add_u32 v{v+q}, 0x10000, v{v+q}"]
    ins = {"min": "v_min_u32", "max": "v_max_u32", "avg": "v_add_u32"}[op]
    r += [f"{ins} v{v}, v{v}, v{v+1}", f"{ins} v{v+2}, v{v+2}, v{v+3}", f"{ins} v{v}, v{v}, v{v+2}"]
    for m in ("row_shr:1 row_mask:0xf", "row_shr:2 row_mask:0xf", "row_shr:4 row_mask:0xf", "row_shr:8 row_mask:0xf", "row_bcast:15 row_mask:0xa", "row_bcast:31 row_mask:0xc"):
        r += ["s_nop 1", f"{ins}_dpp v{v}, v{v}, v{v} {m} bank_mask:0xf"]
    r += ["s_nop 1", f"v_readlane_b32 s{sd}, v{v}, 63", "s_nop 3"]
    r += [f"s_lshr_b32 s{sd}, s{sd}, 5" if op == "avg" else f"s_lshl_b32 s{sd}, s{sd}, 3"]
    return r
o += red(A, 4, 12) + red(B, 8, 13)
o += ["s_sub_u32 s12, s13, s12", "s_max_i32 s12, s12, 0", "s_min_u32 s12, s12, 50000", "s_memrealtime s[14:15]", "s_waitcnt lgkmcnt(0)",
      "LD_spin:", "s_memrealtime s[16:17]", "s_waitcnt lgkmcnt(0)", "s_sub_u32 s16, s16, s14", "s_cmp_lt_u32 s16, s12", "s_cbranch_scc1 LD_spin", "LD_end:", "s_endpgm"]
s = s.replace('.section .rodata', '.globl diag_kernel\n.p2align 8\n.type diag_kernel,@function\ndiag_kernel:\n' + "\n".join(o) + '\n.section .rodata', 1)
s += '''.p2align 6
.amdhsa_kernel diag_kernel
  .amdhsa_next_free_vgpr 16
  .amdhsa_next_free_sgpr 32
  .amdhsa_accum_offset 16
  .amdhsa_group_segment_fixed_size 0
  .amdhsa_kernarg_size 72
  .amdhsa_user_sgpr_count 2
  .amdhsa_user_sgpr_kernarg_segment_ptr 1
  .amdhsa_system_sgpr_workgroup_id_x 1
.end_amdhsa_kernel
'''
open(out, "w").write(s)
```

```python
import struct
import sys

OPT = dict(stamp=0, safe=0, pf=1, eafirst=0, sleep=2, outsc=0, prio=1)
for a in sys.argv[2:]:
    k, v = a.split("=")
    assert k in OPT, k
    OPT[k] = int(v)

N, E = 12500, 800000
NB, NPB, CH = 256, 49, 3136
MAGIC, MSHIFT = 21400, 20
NROW = NB * NPB

WS_X = 0
WS_AT = 4096
WS_TAB = 8 << 20
WS_REC = 9 << 20
RECB = CH * 12
WS_END = WS_REC + NB * RECB
WS_STAMP = 32 << 20


def f32(x):
    return "0x%08x" % struct.unpack("<I", struct.pack("<f", x))[0]


NLOG2E = f32(-1.4426950408889634)
PLOG2E = f32(1.4426950408889634)
NLN2 = f32(-0.6931471805599453)


class Asm:
    def __init__(self):
        self.l = []

    def __call__(self, s):
        if isinstance(s, list):
            s = "\n".join(s)
        for x in s.strip("\n").split("\n"):
            x = x.strip()
            if x:
                self.l.append(x if x.endswith(":") else "    " + x)

    def text(self):
        return "\n".join(self.l) + "\n"


def vr(a, n):
    return f"v[{a}:{a+n-1}]"


def sr(a, n):
    return f"s[{a}:{a+n-1}]"


def dpp_scan(o, v):
    for m in ("row_shr:1 row_mask:0xf", "row_shr:2 row_mask:0xf", "row_shr:4 row_mask:0xf",
              "row_shr:8 row_mask:0xf", "row_bcast:15 row_mask:0xa", "row_bcast:31 row_mask:0xc"):
        o(f"s_nop 1\nv_add_u32_dpp v{v}, v{v}, v{v} {m} bank_mask:0xf")


def mfma32(d, a, b, c=None):
    cs = vr(d, 16) if c is None else c
    return f"v_mfma_f32_32x32x16_bf16 {vr(d,16)}, {vr(a,4)}, {vr(b,4)}, {cs}"


def mfma16(d, a, b, c=None):
    cs = vr(d, 4) if c is None else c
    return f"v_mfma_f32_16x16x32_bf16 {vr(d,4)}, {vr(a,4)}, {vr(b,4)}, {cs}"


RS = 656
L_NODE = 0
L_WU = 50 * RS
L_XT = L_WU + 16384
L_HIST2 = L_XT + 8192
L_EAZ = L_HIST2 + 256
L_FLAG = L_EAZ + 8
L_LOFF = 57856
LSTR, LD = 528, 26624
SLOTS, NGMAX = 320, 512
L_EA2 = L_LOFF + 2 * LD
L_DL = L_EA2 + 16 * SLOTS * 8
DD = 2816
L_DN = L_DL + DD
LDS = L_DN + DD
L_HIST1 = L_LOFF
L_OFFS = L_HIST1 + 1024
L_SORT = L_OFFS + 1024
L_EA1 = L_SORT + CH * 8
L_W12 = L_EA1 + 13 * 2048
assert L_FLAG + 8 <= L_LOFF and LDS <= 163840 and L_W12 + 16384 <= L_DL and 50 * LSTR <= LD

DST, SRC, EAS, WS, XS, WM, WU, OUT, AT, ATS = 16, 20, 24, 28, 32, 36, 40, 44, 48, 52
sWave, sB, sXo, sSelE, sSelO, sRun, sK, sTag, sRedo, sRec = 6, 7, 8, 9, 10, 11, 12, 13, 14, 15
M0_, M1_ = 56, 58
sMask = 56
sBad = 72
sM49, sO4, sO8, sScale = 60, 61, 62, 63
sT0, sT1 = 74, 75
STAMP0 = 76

X = [8, 24, 40]
Z, T, OF = 56, 72, 88
AX, BXE, BXO = 96, 100, 104
Nn, Da, Db, Dk, CK = 108, 110, 112, 114, 116
LA, FA, LG, SL, DR, pH, pG, pR = 118, 120, 122, 123, 124, 125, 126, 127
cT, cC, cJ = 3, 4, 5
R0, R1 = T + 12, T + 14


def gen():
    o = Asm()
    nst = [0]

    def st():
        if OPT["stamp"]:
            o(f"s_memrealtime {sr(STAMP0 + 2 * nst[0], 2)}")
            nst[0] += 1
            assert STAMP0 + 2 * nst[0] <= 102

    vP, vD, vS, vW12, vWU, vW3, vX = 6, 8, 12, 16, 20, 24, 28
    o("s_cmp_ge_u32 s2, 256\ns_cbranch_scc1 L_end")
    st()
    o(f"""s_load_dwordx2 {sr(DST,2)}, s[0:1], 24
    s_load_dwordx2 {sr(SRC,2)}, s[0:1], 16
    s_load_dwordx2 {sr(EAS,2)}, s[0:1], 8
    s_load_dwordx2 {sr(WM,2)}, s[0:1], 32
    s_load_dwordx2 {sr(XS,2)}, s[0:1], 0
    s_load_dwordx2 {sr(WU,2)}, s[0:1], 40
    s_load_dwordx2 {sr(WS,2)}, s[0:1], 64
    s_load_dwordx2 {sr(OUT,2)}, s[0:1], 48
    v_lshrrev_b32 v1, 6, v0
    v_and_b32 v2, 63, v0
    v_readfirstlane_b32 s{sWave}, v1
    v_lshl_add_u32 v{vP}, v1, 7, v2
    s_mul_i32 s4, s2, {CH//2}
    s_sub_u32 s4, {E//2}, s4
    s_min_u32 s4, s4, {CH//2}
    v_add_u32 v7, 64, v{vP}
    v_cmp_gt_u32 {sr(M0_,2)}, s4, v{vP}
    v_cmp_gt_u32 {sr(M1_,2)}, s4, v7
    v_lshlrev_b32 v7, 3, v{vP}
    v_lshlrev_b32 v30, 2, v0
    v_mov_b32 v32, 0
    ds_write_b32 v30, v32 offset:{L_HIST1}
    s_mul_i32 s{sO4}, s2, {CH*4}
    s_mov_b32 s{DST+2}, {E*4}
    s_mov_b32 s{DST+3}, 0x20000
    s_mov_b32 s{SRC+2}, {E*4}
    s_mov_b32 s{SRC+3}, 0x20000
    s_mov_b32 s{EAS+2}, {E*8}
    s_mov_b32 s{EAS+3}, 0x20000
    s_mov_b32 s{WM+2}, {132*128}
    s_mov_b32 s{WM+3}, 0x20000
    s_mov_b32 s{XS+2}, {N*128}
    s_mov_b32 s{XS+3}, 0x20000
    s_mov_b32 s{WU+2}, {128*128}
    s_mov_b32 s{WU+3}, 0x20000
    s_mov_b32 s{WS+2}, {WS_END}
    s_mov_b32 s{WS+3}, 0x20000
    s_lshl_b32 s{sO8}, s{sO4}, 1
    s_and_b32 s{sB}, s2, 7
    s_lshl_b32 s{sB}, s{sB}, 5
    s_lshr_b32 s4, s2, 3
    s_add_u32 s{sB}, s{sB}, s4
    s_mul_i32 s{sXo}, s{sB}, {NPB*128}
    v_lshlrev_b32 v31, 4, v0
    v_lshlrev_b32 v33, 4, v{vP}
    v_bfe_u32 v34, v0, 4, 3
    v_lshlrev_b32 v34, 4, v34
    v_xor_b32 v34, v31, v34
    v_and_b32 v35, 31, v0
    v_lshlrev_b32 v35, 2, v35
    s_cmp_lt_u32 s{sWave}, 8
    s_cselect_b64 {sr(64,2)}, -1, 0
    s_lshl_b32 s{sT0}, s{sWave}, 10
    s_lshl_b32 s{sT1}, s{sWave}, 11
    s_movk_i32 s5, {128*128}
    s_waitcnt lgkmcnt(0)
    s_mov_b64 exec, {sr(M0_,2)}
    buffer_load_dwordx2 {vr(vD,2)}, v7, {sr(DST,4)}, s{sO4} offen
    s_mov_b64 exec, {sr(M1_,2)}
    buffer_load_dwordx2 {vr(vD+2,2)}, v7, {sr(DST,4)}, s{sO4} offen offset:512""")
    if not OPT["eafirst"]:
        o("s_barrier")
    o(f"""buffer_load_dwordx2 {vr(vS+2,2)}, v7, {sr(SRC,4)}, s{sO4} offen offset:512
    s_mov_b64 exec, {sr(M0_,2)}
    buffer_load_dwordx2 {vr(vS,2)}, v7, {sr(SRC,4)}, s{sO4} offen
    s_mov_b64 exec, -1
    s_add_u32 m0, s{sT0}, {L_XT}
    buffer_load_dwordx4 {vr(vW12,4)}, v31, {sr(WM,4)}, 0 offen
    s_mov_b64 exec, {sr(64,2)}
    buffer_load_dwordx4 v34, {sr(XS,4)}, s{sXo} offen lds
    s_add_u32 m0, s{sT1}, {L_EA1}
    s_mov_b64 exec, {sr(M0_,2)}
    buffer_load_dwordx4 v33, {sr(EAS,4)}, s{sO8} offen lds
    s_mov_b64 exec, {sr(M1_,2)}
    buffer_load_dwordx4 v33, {sr(EAS,4)}, s{sO8} offen offset:1024 lds
    s_mov_b64 exec, -1
    buffer_load_dwordx4 {vr(vWU,4)}, v31, {sr(WU,4)}, 0 offen""")
    for k in range(4):
        o(f"buffer_load_dword v{vW3+k}, v35, {sr(WM,4)}, s5 offen offset:{k*128}")
    o(f"buffer_load_dword v{vX}, v32, {sr(WS,4)}, 0 offen sc1")
    if OPT["eafirst"]:
        o("s_barrier")
    o(f"""s_mov_b32 s{OUT+3}, 0x20000
    s_add_u32 s{OUT+2}, s{sXo}, {NPB*128}
    s_min_u32 s{OUT+2}, s{OUT+2}, {N*128}
    s_add_u32 s{AT}, s{WS}, {WS_AT}
    s_addc_u32 s{AT+1}, s{WS+1}, 0
    s_mov_b32 s{ATS}, s{AT}
    s_mov_b32 s{ATS+1}, s{AT+1}
    s_or_b32 s{AT+1}, s{AT+1}, 0x80000000
    s_mov_b32 s{AT+2}, {2*NROW*128}
    s_mov_b32 s{AT+3}, 0x00c00000
    s_mov_b32 s{ATS+3}, 0x20000
    s_mov_b32 s{sSelE}, 0x05040100
    s_mov_b32 s{sSelO}, 0x07060302
    s_movk_i32 s{sM49}, -{NPB}
    s_mul_i32 s{sRec}, s2, {RECB}
    s_add_u32 s{sRec}, s{sRec}, {WS_REC}
    s_mov_b32 s{sRedo}, 0
    v_mov_b32 v33, 0
    v_mov_b32 v34, 0
    v_mov_b32 v35, 0
    ds_write_b128 v31, v[32:35]
    ds_write_b128 v31, v[32:35] offset:16384
    ds_write_b128 v31, v[32:35] offset:{50*RS-16384}
    v_mul_u32_u24 v36, {LSTR}, v2
    v_add_u32 v36, {L_LOFF}, v36
    v_cmp_gt_u32 vcc, 64, v0
    s_movk_i32 s4, 68
    v_cmp_gt_u32 {sr(66,2)}, s4, v0
    v_mov_b32 v38, {L_LOFF + 49*LSTR}
    v_cndmask_b32 v37, 0, v36, vcc
    v_cmp_gt_u32 vcc, {DD//4}, v0
    v_mov_b32 v39, {49*RS}
    v_add_u32 v40, {L_DL}, v30
    s_mov_b64 exec, {sr(66,2)}
    ds_write_b32 v30, v37 offset:{L_HIST2}
    s_mov_b64 exec, vcc
    ds_write2st64_b32 v40, v38, v39 offset0:0 offset1:{DD//256}
    s_mov_b64 exec, -1""")
    o(f"""v_lshrrev_b32 v36, 5, v2
    s_lshl_b32 s4, s{sWave}, 4
    s_add_u32 s4, s4, {L_DL}
    v_lshl_add_u32 v{pH}, v36, 3, s4
    v_bfe_u32 v37, v2, 2, 2
    v_lshl_add_u32 v{pR}, v37, 2, s4
    v_and_b32 v38, 1, v2
    v_and_b32 v37, 1, v37
    v_lshl_add_u32 v39, v37, 1, v38
    v_lshl_add_u32 v{pG}, v39, 2, s4
    v_bfe_u32 v39, v2, 1, 1
    v_bfe_u32 v40, v2, 3, 2
    v_lshl_add_u32 v39, v40, 1, v39
    v_lshlrev_b32 v{cJ}, 2, v39
    v_bfe_u32 v39, v2, 4, 1
    v_and_b32 v40, 3, v2
    v_lshlrev_b32 v40, 3, v40
    v_lshl_add_u32 v{cT}, v39, 5, v40
    v_and_b32 v39, 31, v2
    v_lshlrev_b32 v{cC}, 3, v39
    v_mov_b32 v40, 0xbf80
    v_lshlrev_b32 v38, 4, v38
    v_lshlrev_b32 v40, v38, v40
    v_lshl_add_u32 v37, v36, 1, v37
    v_cmp_eq_u32 vcc, 0, v37
    v_cmp_eq_u32 {sr(66,2)}, 1, v37
    v_mov_b32 v{CK}, 0
    v_mov_b32 v{CK+1}, 0
    v_cndmask_b32 v{AX+2}, 0, v40, vcc
    v_cndmask_b32 v{AX+3}, 0, v40, {sr(66,2)}""")
    vJx, vJw, vJg, vJb, vJr, vSt, vOne = 88, 89, 90, 91, 92, 93, 94
    o(f"""s_bfe_u32 s4, s{sWave}, 0x20001
    s_lshl_b32 s4, s4, 4
    s_and_b32 s5, s{sWave}, 1
    s_lshr_b32 s{sT0}, s{sWave}, 3
    v_and_b32 v36, 15, v2
    v_lshrrev_b32 v37, 4, v2
    v_add_u32 v38, s4, v36
    v_bfe_u32 v39, v2, 1, 3
    v_xor_b32 v39, v39, v37
    v_lshlrev_b32 v39, 4, v39
    v_lshl_add_u32 v{vJx}, v38, 7, v39
    v_bfe_u32 v39, v2, 2, 2
    v_lshl_add_u32 v39, v37, 3, v39
    v_and_b32 v40, 3, v2
    v_lshlrev_b32 v40, 3, v40
    v_lshl_add_u32 v39, v39, 7, v40
    s_lshl_b32 s{sT1}, s{sT0}, 13
    s_lshl_b32 s3, s5, 5
    s_add_u32 s{sT1}, s{sT1}, s3
    s_add_u32 s{sT1}, s{sT1}, {L_W12}
    v_add_u32 v{vJw}, s{sT1}, v39
    v_lshl_add_u32 v{vJr}, v37, 2, s4
    v_lshlrev_b32 v39, 7, v{vJr}
    v_lshl_add_u32 v{vJg}, v36, 2, v39
    v_mul_u32_u24 v39, {RS}, v{vJr}
    v_lshl_add_u32 v39, v36, 1, v39
    v_add_u32 v{vJb}, s3, v39
    s_mul_i32 s3, s{sT0}, {NROW*128}
    s_add_u32 s3, s3, s{sXo}
    s_add_u32 s{ATS+2}, s3, {NPB*128}
    s_lshl_b32 s5, s5, 6
    s_add_u32 s{sT1}, s3, s5
    s_lshl_b32 s{sScale}, s{sT0}, 31
    s_xor_b32 s{sScale}, s{sScale}, {NLOG2E}
    v_lshrrev_b32 v39, 3, v0
    v_lshlrev_b32 v39, 7, v39
    v_and_b32 v40, 7, v0
    v_lshl_add_u32 v{vSt}, v40, 3, v39
    v_mov_b32 v{vOne}, 1""")
    vA, vR, vPair = 32, 36, 40
    for i in range(4):
        o(f"v_lshlrev_b32 v{vPair+2*i+1}, 4, v{vP}" if i == 0 else "")
    for i in (3, 2, 1, 0):
        o(f"v_add_u32 v{vPair+2*i+1}, {L_EA1 + 8*(i&1) + 1024*(i>>1)}, v{vPair+1}")
    o(f"""v_lshlrev_b32 v7, 4, v2
    s_cmp_ge_u32 s{sWave}, 13
    s_cbranch_scc1 L_nobin1
    s_waitcnt vmcnt(12)""")
    st()
    for i in range(4):
        o(f"""v_mul_u32_u24 v{vA+i}, {MAGIC}, v{vD+i}
        v_lshrrev_b32 v{vR+i}, {MSHIFT}, v{vA+i}
        v_lshlrev_b32 v{vA+i}, 2, v{vR+i}
        v_mad_i32_i24 v{vD+i}, v{vR+i}, s{sM49}, v{vD+i}""")
        if i == 1:
            o(f"""s_mov_b64 exec, {sr(M0_,2)}
            ds_add_rtn_u32 v{vR}, v{vA}, v{vOne} offset:{L_HIST1}
            ds_add_rtn_u32 v{vR+1}, v{vA+1}, v{vOne} offset:{L_HIST1}
            s_mov_b64 exec, {sr(M1_,2)}""")
    o(f"""ds_add_rtn_u32 v{vR+2}, v{vA+2}, v{vOne} offset:{L_HIST1}
    ds_add_rtn_u32 v{vR+3}, v{vA+3}, v{vOne} offset:{L_HIST1}
    s_mov_b64 exec, -1
    L_nobin1:
    s_waitcnt vmcnt(9)
    v_add_u32 v52, {L_W12}, v{vSt}
    v_perm_b32 v48, v{vW12+1}, v{vW12}, s{sSelE}
    v_perm_b32 v49, v{vW12+3}, v{vW12+2}, s{sSelE}
    v_perm_b32 v50, v{vW12+1}, v{vW12}, s{sSelO}
    v_perm_b32 v51, v{vW12+3}, v{vW12+2}, s{sSelO}
    ds_write2_b64 v52, v[48:49], v[50:51] offset0:0 offset1:8
    s_waitcnt vmcnt(8) lgkmcnt(0)
    s_barrier""")
    st()
    vC, vO = 48, 52
    o(f"""s_cmp_ge_u32 s{sWave}, 13
    s_cbranch_scc1 L_nobin2
    ds_read_b128 {vr(vC,4)}, v7 offset:{L_HIST1}""")
    for i in range(4):
        o(f"""v_lshlrev_b32 v{vS+i}, 2, v{vS+i}
        v_lshl_or_b32 v{vPair+2*i}, v{vD+i}, 18, v{vS+i}""")
    o(f"""s_waitcnt lgkmcnt(0)
    v_add_u32 v{vO+2}, v{vC}, v{vC+1}
    v_add_u32 v{vO+3}, v{vO+2}, v{vC+2}
    v_add_u32 v8, v{vO+3}, v{vC+3}
    v_mov_b32 v9, v8""")
    dpp_scan(o, 9)
    o(f"""v_sub_u32 v{vO}, v9, v8
    v_add_u32 v{vO+1}, v{vO}, v{vC}
    v_add_u32 v{vO+2}, v{vO}, v{vO+2}
    v_add_u32 v{vO+3}, v{vO}, v{vO+3}
    ds_write_b128 v7, {vr(vO,4)} offset:{L_OFFS}""")
    for i in range(4):
        o(f"ds_read_b32 v{vA+i}, v{vA+i} offset:{L_OFFS}")
    for i in range(4):
        o(f"s_waitcnt lgkmcnt({3-i})\nv_add_lshl_u32 v{vA+i}, v{vA+i}, v{vR+i}, 3")
    for i in range(4):
        if i % 2 == 0:
            o(f"s_mov_b64 exec, {sr((M0_, M1_)[i//2],2)}")
        o(f"ds_write_b64 v{vA+i}, {vr(vPair+2*i,2)} offset:{L_SORT}")
    o("s_mov_b64 exec, -1\nL_nobin2:")
    st()
    jX, jW, jA = 56, 64, 80
    o(f"""v_xor_b32 v8, 64, v{vJx}
    ds_read_b128 {vr(jX,4)}, v{vJx} offset:{L_XT}
    ds_read_b128 {vr(jX+4,4)}, v8 offset:{L_XT}""")
    for t in range(2):
        for s in range(2):
            for u in range(2):
                o(f"ds_read_b64_tr_b16 {vr(jW + 8*t + 4*s + 2*u, 2)}, v{vJw} offset:{s*4096 + u*512 + t*64}")
    o("s_waitcnt lgkmcnt(4)")
    o([mfma16(jA, jX, jW, "0"), mfma16(jA, jX + 4, jW + 4), "s_waitcnt lgkmcnt(0)",
       mfma16(jA + 4, jX, jW + 8, "0"), mfma16(jA + 4, jX + 4, jW + 12)])
    o(f"s_mov_b32 s4, 0x07060100\ns_nop 6")
    for q in range(8):
        o(f"v_mul_f32 v{jA+q}, s{sScale}, v{jA+q}")
    for r in range(4):
        o(f"""v_cvt_pk_bf16_f32 v{jX+r}, v{jA+r}, v{jA+4+r}
        v_perm_b32 v{jX+4+r}, v{jA+4+r}, v{jX+r}, s4
        buffer_store_dword v{jX+4+r}, v{vJg}, {sr(ATS,4)}, s{sT1} offen offset:{r*128} sc1""")
    o(f"s_cmp_lt_u32 s{sWave}, 8\ns_cbranch_scc1 L_nobt")
    for r in range(4):
        o(f"""v_cmp_gt_u32 vcc, {NPB - r}, v{vJr}
        s_mov_b64 exec, vcc
        ds_write_b16 v{vJb}, v{jX+r} offset:{512 + r*RS}
        ds_write_b16_d16_hi v{vJb}, v{jX+r} offset:{576 + r*RS}""")
    o(f"""s_mov_b64 exec, -1
    L_nobt:
    v_lshlrev_b32 v8, 3, v0
    v_add_u32 v8, {L_SORT}, v8
    v_mul_u32_u24 v9, 12, v0
    s_add_u32 s4, s{sRec}, 12288
    s_add_u32 s5, s{sRec}, 24576
    s_cmp_lg_u32 s{sWave}, 15
    s_waitcnt vmcnt(4) lgkmcnt(0)
    s_barrier""")
    st()
    vOut = 32
    for k in range(3):
        o(f"ds_read_b64 {vr(vOut+4*k+2,2)}, v8 offset:{8192*k}")
    for k in range(3):
        o(f"s_waitcnt lgkmcnt(2)\nds_read_b64 {vr(vOut+4*k,2)}, v{vOut+4*k+3}")
    for k, s in enumerate((sRec, 4, 5)):
        o(f"""s_waitcnt lgkmcnt({2-k})
        buffer_store_dwordx3 {vr(vOut+4*k,3)}, v9, {sr(WS,4)}, s{s} offen sc1""")
    o(f"""s_cbranch_scc1 L_notail
    ds_read_b64 {vr(vOut+14,2)}, v8 offset:{16384+512}
    s_waitcnt lgkmcnt(0)
    ds_read_b64 {vr(vOut+12,2)}, v{vOut+15}
    s_waitcnt lgkmcnt(0)
    buffer_store_dwordx3 {vr(vOut+12,3)}, v9, {sr(WS,4)}, s5 offen offset:768 sc1
    L_notail:""")
    o("s_barrier")
    st()
    o(f"""v_lshrrev_b32 v8, 4, v0
    v_and_b32 v9, 15, v0
    v_mul_u32_u24 v10, {LSTR}, v8
    v_lshl_add_u32 v10, v9, 5, v10
    v_add_u32 v10, {L_LOFF}, v10
    s_mul_i32 s4, s{sB}, {NPB}
    s_add_u32 s4, s4, {NROW}
    v_add_lshl_u32 v12, v8, s4, 2
    v_cmp_gt_u32 vcc, {NPB}, v8
    v_mov_b32 v13, {(NROW-1)*4}
    v_cmp_gt_u32 {sr(66,2)}, 50, v8
    v_mov_b32 v16, {L_EAZ}
    v_cndmask_b32 v12, v13, v12, vcc
    v_mov_b32 v17, v16
    v_mov_b32 v18, v16
    v_mov_b32 v19, v16
    v_mov_b32 v13, v12
    v_mov_b32 v14, v12
    v_mov_b32 v15, v12
    s_mov_b64 exec, {sr(66,2)}
    ds_write_b128 v10, v[12:15]
    ds_write_b128 v10, v[12:15] offset:16
    ds_write_b128 v10, v[16:19] offset:{LD}
    ds_write_b128 v10, v[16:19] offset:{LD+16}
    s_mov_b64 exec, -1
    v_readfirstlane_b32 s{sTag}, v{vX}
    v_perm_b32 v8, v{vWU+1}, v{vWU}, s{sSelE}
    v_perm_b32 v9, v{vWU+3}, v{vWU+2}, s{sSelE}
    v_perm_b32 v10, v{vWU+1}, v{vWU}, s{sSelO}
    v_perm_b32 v11, v{vWU+3}, v{vWU+2}, s{sSelO}
    v_add_u32 v{vSt}, {L_WU}, v{vSt}
    ds_write2_b64 v{vSt}, v[8:9], v[10:11] offset0:0 offset1:8
    s_mul_i32 s{sTag}, s{sTag}, 0x9e3779b5
    s_add_u32 s{sTag}, s{sTag}, 0x7f4a7c15
    s_mov_b32 s4, {NLOG2E}
    v_cmp_lt_u32 vcc, 31, v2""")
    for k in range(4):
        o(f"""v_lshlrev_b32 v{12+k}, 16, v{vW3+k}
        v_and_b32 v{16+k}, 0xffff0000, v{vW3+k}
        v_mul_f32 v{12+k}, s4, v{12+k}
        v_mul_f32 v{16+k}, s4, v{16+k}""")
    for t, bx in enumerate((BXE, BXO)):
        for pr in range(2):
            a = 12 + 4 * t + 2 * pr
            o(f"""v_cvt_pk_bf16_f32 v20, v{a}, v{a+1}
            v_lshlrev_b32 v21, 16, v20
            v_and_b32 v22, 0xffff0000, v20
            v_sub_f32 v21, v{a}, v21
            v_sub_f32 v22, v{a+1}, v22
            v_cvt_pk_bf16_f32 v21, v21, v22
            v_cndmask_b32 v{bx+pr}, v20, v21, vcc""")
    vQ, vWb, vTa, vPf = 88, 89, 90, 6
    for i in range(4):
        o(f"v_lshl_or_b32 v{8+2*i}, v{vC+i}, 16, v{vO+i}\nv_mov_b32 v{9+2*i}, s{sTag}")
    o(f"""v_lshlrev_b32 v16, 5, v2
    s_lshl_b32 s4, s2, 11
    s_add_u32 s4, s4, {WS_TAB}
    v_and_b32 v{vQ}, 3, v0
    v_lshrrev_b32 v17, 2, v0
    s_mov_b32 s5, {RECB}
    v_mul_lo_u32 v{vWb}, v17, s5
    v_lshlrev_b32 v{vTa}, 11, v17
    v_and_b32 v18, 7, v17
    v_lshrrev_b32 v17, 3, v17
    v_lshl_add_u32 v17, v18, 5, v17
    v_mul_u32_u24 v17, {NPB}, v17
    s_lshr_b32 s5, s2, 3
    v_lshl_add_u32 v18, v{vQ}, 5, s5
    v_add_lshl_u32 v{vPf}, v17, v18, 7
    v_cmp_gt_u32 {sr(sBad,2)}, {NPB}, v18
    s_lshl_b32 s{sT0}, s{sB}, 3
    s_add_u32 s{sT0}, s{sT0}, {WS_TAB}
    s_mul_i32 s{sRun}, s{sWave}, {SLOTS}
    s_add_u32 s{sRun}, s{sRun}, {L_EA2//8}
    s_mov_b32 s{sT1}, 0xf000f000
    s_mov_b32 s3, 0x100000
    s_cmp_lg_u32 s{sWave}, 0
    s_waitcnt vmcnt(0) lgkmcnt(0)
    s_barrier
    s_cbranch_scc1 L_poll
    buffer_store_dwordx4 v[8:11], v16, {sr(WS,4)}, s4 offen sc1
    buffer_store_dwordx4 v[12:15], v16, {sr(WS,4)}, s4 offen offset:16 sc1""")
    vTab = 92
    o("L_poll:")
    if OPT["stamp"]:
        o(f"s_cmp_lg_u32 s3, 0x100000\ns_cbranch_scc1 L_pollns")
        st()
        o("L_pollns:")
    o(f"""buffer_load_dwordx2 {vr(vTab,2)}, v{vTa}, {sr(WS,4)}, s{sT0} offen sc1
    s_waitcnt vmcnt(0)
    v_xor_b32 v20, s{sTag}, v{vTab+1}
    v_and_or_b32 v20, v{vTab}, s{sT1}, v20
    v_cmp_ne_u32 vcc, 0, v20
    s_and_b64 exec, exec, vcc
    s_cbranch_scc0 L_polled""")
    if OPT["sleep"]:
        o(f"s_sleep {OPT['sleep']}")
    o(f"""s_sub_u32 s3, s3, 1
    s_cbranch_scc0 L_poll
    s_endpgm
    L_polled:
    s_mov_b64 exec, -1""")
    st()
    vRec, vRem, vGa = 24, 20, 21
    npf = 1 if OPT["pf"] else 0
    o(f"""v_and_b32 v{vGa}, 0xffff, v{vTab}
    v_lshrrev_b32 v{vTab}, 16, v{vTab}
    v_add_u32 v{vGa}, v{vGa}, v{vQ}
    v_sub_u32 v{vRem}, v{vTab}, v{vQ}
    v_mad_u32_u24 v{vGa}, v{vGa}, 12, v{vWb}
    s_mov_b32 s5, {WS_REC}""")
    for r in range(8):
        o(f"v_cmp_lt_i32 {sr(sMask+2*r,2)}, {4*r}, v{vRem}")
    o(f"v_cmp_lt_u32 vcc, 32, v{vTab}")
    for r in range(8):
        o(f"""s_mov_b64 exec, {sr(sMask+2*r,2)}
        buffer_load_dwordx3 {vr(vRec+4*r,3)}, v{vGa}, {sr(WS,4)}, s5 offen offset:{48*r}""")
    if npf:
        o(f"""s_mov_b64 exec, {sr(sBad,2)}
        s_mov_b32 s5, {WS_AT}
        buffer_load_dword v{vPf}, v{vPf}, {sr(WS,4)}, s5 offen""")
    o(f"s_mov_b64 exec, -1\ns_add_u32 s5, s{sRun}, {SLOTS}")
    for r in range(8):
        o(f"""v_mbcnt_lo_u32_b32 v{vRec+4*r+3}, s{sMask+2*r}, 0
        v_mbcnt_hi_u32_b32 v{vRec+4*r+3}, s{sMask+2*r+1}, v{vRec+4*r+3}
        v_add_lshl_u32 v{vRec+4*r+3}, v{vRec+4*r+3}, s{sRun}, 3
        s_bcnt1_i32_b64 s4, {sr(sMask+2*r,2)}
        s_add_u32 s{sRun}, s{sRun}, s4""")
    vIni, vNa, vL4 = 16, 17, 18
    o(f"""s_cmp_gt_u32 s{sRun}, s5
    s_cselect_b32 s4, 1, 0
    s_or_b32 s4, s4, vcc_lo
    s_or_b32 s4, s4, vcc_hi
    v_mov_b32 v19, 0
    v_mov_b32 v20, 4
    s_cbranch_scc0 L_ok1
    ds_write_b32 v19, v20 offset:{L_FLAG}
    L_ok1:
    v_mul_u32_u24 v{vIni}, {LSTR}, v2
    v_add_u32 v{vIni}, {L_LOFF - 28}, v{vIni}
    v_mul_u32_u24 v{vNa}, {RS}, v2
    v_lshlrev_b32 v{vL4}, 2, v2
    s_lshl_b32 s4, s{sWave}, 5
    s_add_u32 s4, s4, 28
    v_add_u32 v22, s4, v{vIni}
    s_add_u32 s{sT0}, s{sWave}, {L_DL//4}""")
    vRank = 8
    for r in range(8):
        w = vRec + 4 * r
        o(f"""s_mov_b64 exec, {sr(sMask+2*r,2)}
        s_cbranch_execz L_p1done
        s_waitcnt vmcnt({7-r+npf})
        v_lshrrev_b32 v21, 16, v{w+2}
        ds_add_rtn_u32 v{vRank+r}, v21, v20 offset:{L_HIST2}
        ds_write_b64 v{w+3}, {vr(w,2)}
        v_and_b32 v{w+2}, 0xffff, v{w+2}""")
    o("L_p1done:\ns_waitcnt lgkmcnt(0)")
    for r in range(8):
        w = vRec + 4 * r
        o(f"""s_mov_b64 exec, {sr(sMask+2*r,2)}
        s_cbranch_execz L_p2done
        ds_write2st64_b32 v{vRank+r}, v{w+2}, v{w+3} offset0:0 offset1:{LD//256}""")
    o(f"""L_p2done:
    s_mov_b64 exec, -1
    s_waitcnt lgkmcnt(0)
    s_barrier""")
    st()
    o(f"""ds_read_b32 v8, v{vL4} offset:{L_HIST2}
    ds_read_b32 v9, v19 offset:{L_FLAG}
    s_waitcnt lgkmcnt(1)
    v_sub_u32 v8, v8, v{vIni}
    v_lshrrev_b32 v8, 5, v8
    v_mov_b32 v10, v8""")
    dpp_scan(o, 10)
    o(f"""v_cmp_lt_u32 vcc, s{sWave}, v8
    v_cmp_lt_u32 {sr(sBad,2)}, 16, v8
    v_sub_u32 v8, v10, v8
    v_readlane_b32 s{sK}, v10, 63
    v_add_lshl_u32 v8, v8, s{sT0}, 2
    s_waitcnt lgkmcnt(0)
    v_readfirstlane_b32 s4, v9
    s_or_b32 s5, s{sBad}, s{sBad+1}
    s_or_b32 s4, s4, s5
    s_cbranch_scc1 L_slow
    s_cmp_gt_u32 s{sK}, {NGMAX}
    s_cbranch_scc1 L_slow
    s_mov_b64 exec, vcc
    ds_write2st64_b32 v8, v22, v{vNa} offset0:0 offset1:{DD//256}
    s_mov_b64 exec, -1
    s_add_u32 s{sK}, s{sK}, 63
    s_lshr_b32 s{sK}, s{sK}, 2
    s_sub_u32 s{sK}, s{sK}, s{sWave}
    s_lshr_b32 s{sK}, s{sK}, 4
    s_waitcnt lgkmcnt(0)
    s_barrier""")
    st()
    o(f"s_cmp_eq_u32 s{sK}, 0\ns_cbranch_scc1 L_post")

    def PF(d, a, b, c):
        return f"v_pk_fma_f32 {vr(d,2)}, {vr(a,2)}, {vr(b,2)}, {vr(c,2)}"

    def chain(Y, dfin, rr, filler):
        r = [f"v_pk_add_f32 {vr(Da,2)}, {vr(T,2)}, 1.0 op_sel_hi:[1,0]"]
        cur = Da
        for i in range(1, 8):
            nxt = dfin if i == 7 else (Db if cur == Da else Da)
            src = Y if i == 1 else Nn
            r += [PF(Nn, src, T + 2 * i, src), PF(nxt, cur, T + 2 * i, cur), PF(Nn, Y + 2 * i, cur, Nn)]
            cur = nxt
        r += [f"v_rcp_f32 v{rr}, v{dfin}", f"v_rcp_f32 v{rr+1}, v{dfin+1}", filler,
              f"v_pk_mul_f32 {vr(rr,2)}, {vr(Nn,2)}, {vr(rr,2)}",
              f"v_cvt_f64_f32 {vr(R0,2)}, v{rr}", f"v_cvt_f64_f32 {vr(R1,2)}, v{rr+1}"]
        return r

    def exps(Y):
        return [f"v_exp_f32 v{T+i}, v{Y+i}" for i in range(16)]

    def flush(off):
        return [f"ds_add_f64 v{FA}, {vr(R0,2)} offset:{off}", f"ds_add_f64 v{FA+1}, {vr(R1,2)} offset:{off}"]

    def loads(x, par, of=OF):
        r = [f"v_and_b32 v{of+j}, 0x1fffc, v{of+j}" for j in range(8)] if OPT["safe"] else []
        return r + [f"buffer_load_dword v{x+2*j+par}, v{of+j}, {sr(AT,4)}, 0 offen" for j in range(8)]

    def ofr(la, of=OF):
        return [f"ds_read_b128 {vr(of,4)}, v{la}", f"ds_read_b128 {vr(of+4,4)}, v{la} offset:16"]

    def small():
        return [f"ds_read_b64 {vr(AX,2)}, v{SL}", f"ds_read_b64_tr_b16 {vr(BXE+2,2)}, v{DR} offset:512",
                f"ds_read_b64_tr_b16 {vr(BXO+2,2)}, v{DR} offset:576"]

    def shifts(x):
        return [f"v_lshlrev_b64 {vr(Z+2*i,2)}, 16, {vr(x+2*i,2)}" for i in range(8)]

    if OPT["prio"]:
        o("s_setprio 1")
    o(f"""ds_read_b64 {vr(Nn,2)}, v{pH}
    ds_read_b32 v{LG}, v{pG}
    ds_read_b64 {vr(Da,2)}, v{pH} offset:256
    ds_read_b32 v{DR}, v{pR} offset:{DD}
    ds_read_b32 v{Db}, v{pG} offset:256
    ds_read_b64 {vr(LA,2)}, v{pH} offset:512
    ds_read_b64 {vr(FA,2)}, v{pH} offset:{DD}
    s_waitcnt lgkmcnt(5)
    v_add_u32 v{LG}, v{LG}, v{cJ}""")
    o(ofr(Nn, T) + ofr(Nn + 1, T + 8) + [f"ds_read_b32 v{SL}, v{LG} offset:{LD}", "s_waitcnt lgkmcnt(7)"])
    o(ofr(Da, Z) + ofr(Da + 1, Z + 8))
    o(f"v_add_u32 v{DR}, v{DR}, v{cT}\nv_add_u32 v{LG}, v{Db}, v{cJ}\ns_waitcnt lgkmcnt(4)")
    o(loads(X[0], 0, T) + loads(X[0], 1, T + 8) + small())
    o(f"s_waitcnt lgkmcnt(3)\ns_cmp_lt_u32 s{sK}, 2\ns_cbranch_scc1 L_pro1")
    o(loads(X[1], 0, Z) + loads(X[1], 1, Z + 8))
    o(f"s_waitcnt vmcnt(16)\ns_branch L_pro2\nL_pro1:\ns_waitcnt vmcnt(0)\nL_pro2:")
    o(ofr(LA) + [f"ds_read_b32 v{SL}, v{LG} offset:{LD}", f"ds_read_b32 v{DR}, v{pR} offset:{DD+256}"])
    o(shifts(X[0]) + [f"v_mov_b32 v{R0+i}, 0" for i in range(4)] + ["s_waitcnt lgkmcnt(4)"])
    o([mfma32(Z, AX, BXE), mfma32(X[0], AX, BXO), f"v_add_u32 v{FA}, v{FA}, v{cC}", f"v_add_u32 v{FA+1}, v{FA+1}, v{cC}", "s_nop 9"])
    st()
    o(".p2align 6\nL_loop:")
    for u in range(3):
        xc, xn, xf = X[u], X[(u + 1) % 3], X[(u + 2) % 3]
        eZ, eX = exps(Z), exps(xc)
        o(eZ[:6])
        o(["s_waitcnt lgkmcnt(0)", f"v_add_u32 v{DR}, v{DR}, v{cT}"] + flush(256))
        o(f"ds_read_b64 {vr(FA,2)}, v{pH} offset:{DD + 256*u}")
        o(small())
        o(f"s_cmp_lt_u32 s{sK}, 3\ns_cbranch_scc1 L_a{u}")
        o(loads(xf, 0))
        o(f"L_a{u}:")
        o(ofr(LA + 1) + [f"ds_read_b64 {vr(LA,2)}, v{pH} offset:{256*(u+3)}", f"ds_read_b32 v{LG}, v{pG} offset:{256*(u+2)}"])
        o(eZ[6:])
        c = chain(Z, Dk, Db, "s_waitcnt vmcnt(8) lgkmcnt(0)")
        o(c)
        o(f"s_cbranch_scc0 L_b{u}\ns_waitcnt vmcnt(0)\nL_b{u}:")
        o(shifts(xn) + [mfma32(xn, AX, BXO)] + eX[:3] + [mfma32(Z, AX, BXE)] + eX[3:6])
        o([f"v_add_u32 v{FA}, v{FA}, v{cC}", f"v_add_u32 v{FA+1}, v{FA+1}, v{cC}", f"v_add_u32 v{LG}, v{LG}, v{cJ}"] + eX[6:8])
        o(flush(0))
        o(f"s_cbranch_scc1 L_c{u}")
        o(loads(xf, 1))
        if OPT["prio"]:
            o(f"s_branch L_d{u}\nL_c{u}:\ns_setprio 0\nL_d{u}:")
        else:
            o(f"L_c{u}:")
        o(ofr(LA) + [f"ds_read_b32 v{SL}, v{LG} offset:{LD}", f"ds_read_b32 v{DR}, v{pR} offset:{DD + 256*(u+2)}"])
        o(f"s_sub_u32 s{sK}, s{sK}, 1\ns_cmp_lg_u32 s{sK}, 0")
        o(eX[8:])
        if u == 2:
            o([f"v_add_u32 v{p}, 0x300, v{p}" for p in (pH, pG, pR)])
        o(chain(xc, Db, Da, PF(CK, Dk, Db, CK)))
        o("s_cbranch_scc0 L_done" if u < 2 else "s_cbranch_scc1 L_loop")
    o("L_done:")
    o(flush(256))
    o(f"""s_mov_b32 s4, {f32(2.0**120)}
    v_add_f32 v{CK}, v{CK}, v{CK+1}
    v_cmp_ngt_f32 vcc, s4, v{CK}
    s_waitcnt lgkmcnt(0)
    v_mov_b32 v{OF}, 0
    v_mov_b32 v{OF+1}, 4
    s_mov_b64 exec, vcc
    ds_write_b32 v{OF}, v{OF+1} offset:{L_FLAG}
    s_mov_b64 exec, -1""")
    eX_, eW, eA, eAcc, eAg, eG = 8, 16, 48, 56, 64, 72
    o("L_post:")
    st()
    o(f"""s_or_b32 s4, s2, s{sWave}
    s_cbranch_scc1 L_nox
    v_mov_b32 v8, 0
    v_mov_b32 v9, s{sTag}
    s_mov_b64 exec, 1
    buffer_store_dword v9, v8, {sr(WS,4)}, 0 offen sc1
    s_mov_b64 exec, -1
    L_nox:
    s_cmp_ge_u32 s{sWave}, 8
    s_cbranch_scc1 L_ewait
    s_lshr_b32 s4, s{sWave}, 1
    s_lshl_b32 s4, s4, 4
    s_and_b32 s5, s{sWave}, 1
    v_and_b32 v104, 15, v2
    v_lshrrev_b32 v105, 4, v2
    v_add_u32 v106, s4, v104
    v_bfe_u32 v107, v2, 1, 3
    v_xor_b32 v107, v107, v105
    v_lshlrev_b32 v107, 4, v107
    v_lshl_add_u32 v107, v106, 7, v107
    v_xor_b32 v108, 64, v107
    ds_read_b128 {vr(eX_,4)}, v107 offset:{L_XT}
    ds_read_b128 {vr(eX_+4,4)}, v108 offset:{L_XT}
    v_bfe_u32 v107, v2, 2, 2
    v_lshl_add_u32 v107, v105, 3, v107
    v_and_b32 v108, 3, v2
    s_lshl_b32 s3, s5, 5
    v_lshl_add_u32 v108, v108, 3, s3
    v_lshl_add_u32 v109, v107, 7, v108
    v_lshl_add_u32 v110, v107, 8, v108""")
    for t in range(2):
        for s in range(2):
            for u in range(2):
                o(f"ds_read_b64_tr_b16 {vr(eW + 16*t + 4*s + 2*u, 2)}, v109 offset:{L_WU + s*4096 + u*512 + t*64}")
    o(f"""v_mul_u32_u24 v111, {RS}, v106
    v_lshl_add_u32 v111, v105, 6, v111
    v_lshl_add_u32 v112, v105, 2, s4
    v_lshlrev_b32 v113, 7, v112
    v_lshl_add_u32 v113, v104, 2, v113
    s_lshl_b32 s3, s5, 6
    s_add_u32 s3, s3, s{sXo}
    s_waitcnt lgkmcnt(0)""")
    for t in range(2):
        for s in range(2):
            for u in range(2):
                o(f"ds_read_b64_tr_b16 {vr(eW + 16*t + 8 + 4*s + 2*u, 2)}, v110 offset:{L_WU + (64+s)*128 + u*1024 + t*64}")
    for t in range(2):
        for s in range(2):
            o(mfma16(eAcc + 4 * t, eX_ + 4 * s, eW + 16 * t + 4 * s, "0" if s == 0 else None))
    o("s_waitcnt lgkmcnt(0)\ns_barrier")
    st()
    for s in range(2):
        for u in range(4):
            o(f"ds_read_b128 {vr(eG + 16*s + 4*u, 4)}, v111 offset:{s*256 + u*16}")
    for s in range(2):
        for u in range(4):
            g = eG + 16 * s + 4 * u
            o(f"""s_waitcnt lgkmcnt({7 - 4*s - u})
            v_cvt_f32_f64 v{g}, {vr(g,2)}
            v_cvt_f32_f64 v{g+2}, {vr(g+2,2)}
            v_cvt_pk_bf16_f32 v{eA+4*s+u}, v{g}, v{g+2}""")
    o(f"s_mov_b32 s4, {NLN2}\ns_mov_b32 s5, {NLOG2E}")
    for s in range(2):
        for t in range(2):
            o(mfma16(eAg + 4 * t, eA + 4 * s, eW + 16 * t + 8 + 4 * s, "0" if s == 0 else None))
    o("s_nop 7")
    for i in range(8):
        o(f"v_fmac_f32 v{eAcc+i}, s4, v{eAg+i}")
    for i in range(8):
        o(f"v_mul_f32 v{eG+i}, s5, v{eAcc+i}")
    for i in range(8):
        o(f"v_exp_f32 v{eG+i}, v{eG+i}")
    for i in range(8):
        o(f"v_add_f32 v{eG+i}, 1.0, v{eG+i}")
    for i in range(8):
        o(f"v_rcp_f32 v{eG+i}, v{eG+i}")
    for i in range(8):
        o(f"v_mul_f32 v{eG+i}, v{eAcc+i}, v{eG+i}")
    for r in range(4):
        o(f"""v_cvt_pk_bf16_f32 v{eA+r}, v{eG+r}, v{eG+4+r}
        buffer_store_dword v{eA+r}, v113, {sr(OUT,4)}, s3 offen offset:{r*128}{(' sc1', ' nt', ' sc0 sc1')[OPT['outsc']-1] if OPT['outsc'] else ''}""")
    o(f"s_movk_i32 s4, 0x207\nv_mov_b32 v8, 0\nv_mov_b32 v9, 4")
    for r in range(4):
        o(f"""v_cmp_class_f32 vcc, v{eAg+r}, s4
        v_cmp_gt_u32 {sr(sBad,2)}, {NPB - r}, v112
        s_and_b64 exec, vcc, {sr(sBad,2)}
        ds_write_b32 v8, v9 offset:{L_FLAG}
        s_mov_b64 exec, -1""")
    o(f"""s_branch L_chk
    L_ewait:
    s_waitcnt lgkmcnt(0)
    s_barrier""")
    if OPT["stamp"]:
        o(f"s_memrealtime {sr(STAMP0 + 2 * (nst[0] - 1), 2)}")
    o(f"""v_mov_b32 v8, 0
    L_chk:
    s_waitcnt lgkmcnt(0)
    s_barrier
    ds_read_b32 v9, v8 offset:{L_FLAG}
    s_waitcnt lgkmcnt(0)
    v_readfirstlane_b32 s4, v9
    s_cmp_gt_u32 s4, s{sRedo}
    s_cbranch_scc1 L_slow""")
    if OPT["stamp"]:
        o(f"""s_waitcnt vmcnt(0)
        s_memrealtime s[4:5]
        s_lshl_b32 s3, s2, 4
        s_add_u32 s3, s3, s{sWave}
        s_lshl_b32 s3, s3, 6
        s_add_u32 s3, s3, {WS_STAMP}
        s_mov_b32 s{WS+2}, {WS_STAMP + (4 << 20)}
        v_mov_b32 v30, s3
        s_waitcnt lgkmcnt(0)""")
        for i in range(nst[0] + 1):
            sreg = STAMP0 + 2 * i if i < nst[0] else 4
            o(f"v_mov_b32 v31, s{sreg}\nbuffer_store_dword v31, v30, {sr(WS,4)}, 0 offen offset:{4*i}")
    o("L_end:\ns_endpgm")
    o(f"""L_slow:
    s_mov_b32 s{sRedo}, 4
    s_setprio 0
    s_waitcnt vmcnt(0) lgkmcnt(0)
    s_barrier
    v_lshrrev_b32 v10, 4, v0
    v_cmp_gt_u32 vcc, 50, v10
    v_mul_u32_u24 v10, {RS}, v10
    v_and_b32 v12, 15, v0
    v_lshl_add_u32 v10, v12, 5, v10
    v_mov_b32 v12, 0
    v_mov_b32 v13, 0
    v_mov_b32 v14, 0
    v_mov_b32 v15, 0
    v_lshlrev_b32 v6, 1, v2
    s_movk_i32 s5, {128*128}
    s_mov_b64 exec, vcc
    ds_write_b128 v10, v[12:15]
    ds_write_b128 v10, v[12:15] offset:16
    s_mov_b64 exec, -1""")
    for k in range(4):
        o(f"buffer_load_ushort v{16+k}, v6, {sr(WM,4)}, s5 offen offset:{k*128}")
    o(f"s_mov_b32 s4, {NLOG2E}\ns_waitcnt vmcnt(0) lgkmcnt(0)\ns_barrier")
    for k in range(4):
        o(f"v_lshlrev_b32 v{16+k}, 16, v{16+k}\nv_mul_f32 v{16+k}, s4, v{16+k}")
    o(f"""v_lshrrev_b32 v7, 1, v2
    v_and_b32 v8, 1, v2
    v_lshl_add_u32 v8, v8, 5, v7
    v_lshlrev_b32 v7, 1, v8
    v_lshlrev_b32 v8, 3, v8
    s_mov_b32 s56, s{sWave}
    s_movk_i32 s61, {RS//4}
    s_mov_b32 s62, {WS_AT}
    L_sseg:
    s_lshl_b32 s57, s56, 8
    s_add_u32 s57, s57, s{sB}
    s_lshl_b32 s57, s57, 3
    s_add_u32 s57, s57, {WS_TAB}
    buffer_load_dword v20, v12, {sr(WS,4)}, s57 offen sc1
    s_waitcnt vmcnt(0)
    v_readfirstlane_b32 s58, v20
    s_lshr_b32 s59, s58, 16
    s_and_b32 s58, s58, 0xffff
    s_mul_i32 s58, s58, 12
    s_mul_i32 s60, s56, {RECB}
    s_add_u32 s58, s58, s60
    s_add_u32 s58, s58, {WS_REC}
    s_cmp_eq_u32 s59, 0
    s_cbranch_scc1 L_snext
    L_sedge:
    buffer_load_dwordx3 v[20:22], v12, {sr(WS,4)}, s58 offen
    s_waitcnt vmcnt(0)
    v_and_b32 v23, 0xffff, v22
    v_lshl_add_u32 v23, v23, 5, v6
    buffer_load_ushort v23, v23, {sr(WS,4)}, s62 offen
    v_lshrrev_b32 v22, 16, v22
    v_mad_u32_u24 v24, v22, s61, v7
    ds_read_u16 v25, v24 offset:512
    v_mad_u32_u24 v24, v22, s61, v8
    v_lshlrev_b32 v27, 16, v20
    v_and_b32 v20, 0xffff0000, v20
    v_lshlrev_b32 v28, 16, v21
    v_and_b32 v21, 0xffff0000, v21
    v_mul_f32 v27, v27, v16
    v_fmac_f32 v27, v20, v17
    v_fmac_f32 v27, v28, v18
    v_fmac_f32 v27, v21, v19
    s_waitcnt vmcnt(0) lgkmcnt(0)
    v_lshlrev_b32 v23, 16, v23
    v_lshlrev_b32 v25, 16, v25
    v_sub_f32 v27, v27, v25
    v_add_f32 v27, v27, v23
    v_exp_f32 v28, v27
    s_add_u32 s58, s58, 12
    v_add_f32 v28, 1.0, v28
    v_rcp_f32 v28, v28
    s_sub_u32 s59, s59, 1
    v_mul_f32 v28, v27, v28
    v_cvt_f64_f32 v[28:29], v28
    ds_add_f64 v24, v[28:29]
    s_cmp_lg_u32 s59, 0
    s_cbranch_scc1 L_sedge
    L_snext:
    s_add_u32 s56, s56, 16
    s_cmp_lt_u32 s56, 256
    s_cbranch_scc1 L_sseg
    s_branch L_post""")
    return o


def main():
    k = gen()
    n = "standalone__mpnn_edge_mlp__graph_kernel"
    out = f"""; Fused MPNN edge MLP. Phase 1: every workgroup bins 3136 edges by destination bucket (49 nodes) and builds
; @launch grid=(256,1,1) block=(1024,1,1) lds={LDS}
.amdgcn_target "amdgcn-amd-amdhsa--gfx950"
.text
.globl {n}
.p2align 8
.type {n},@function
{n}:
{k.text()}.section .rodata,"a"
.p2align 6
.amdhsa_kernel {n}
  .amdhsa_next_free_vgpr 128
  .amdhsa_next_free_sgpr 102
  .amdhsa_accum_offset 128
  .amdhsa_group_segment_fixed_size 0
  .amdhsa_kernarg_size 72
  .amdhsa_user_sgpr_count 2
  .amdhsa_user_sgpr_kernarg_segment_ptr 1
  .amdhsa_system_sgpr_workgroup_id_x 1
.end_amdhsa_kernel
"""
    open(sys.argv[1], "w").write(out)


main()
```

```python
import struct
import sys

OPT = dict(stamp=0, safe=0, xmap=0, sleep=1, outsc=0, prio=1, bsc=0, eapos=1)
for a in sys.argv[2:]:
    k, v = a.split("=")
    assert k in OPT, k
    OPT[k] = int(v)

N, E = 12500, 800000
NB, NPB, CH = 256, 49, 3136
MAGIC, MSHIFT = 21400, 20
NROW = NB * NPB

WS_X = 0
WS_AT = 4096
WS_TAB = 8 << 20
WS_REC = 9 << 20
RECB = CH * 12
WS_END = WS_REC + NB * RECB
WS_STAMP = 32 << 20


def f32(x):
    return "0x%08x" % struct.unpack("<I", struct.pack("<f", x))[0]


NLOG2E = f32(-1.4426950408889634)
PLOG2E = f32(1.4426950408889634)
NLN2 = f32(-0.6931471805599453)


class Asm:
    def __init__(self):
        self.l = []

    def __call__(self, s):
        if isinstance(s, list):
            s = "\n".join(s)
        for x in s.strip("\n").split("\n"):
            x = x.strip()
            if x:
                self.l.append(x if x.endswith(":") else "    " + x)

    def text(self):
        return "\n".join(self.l) + "\n"


def vr(a, n):
    return f"v[{a}:{a+n-1}]"


def sr(a, n):
    return f"s[{a}:{a+n-1}]"


def dpp_scan(o, v):
    for m in ("row_shr:1 row_mask:0xf", "row_shr:2 row_mask:0xf", "row_shr:4 row_mask:0xf",
              "row_shr:8 row_mask:0xf", "row_bcast:15 row_mask:0xa", "row_bcast:31 row_mask:0xc"):
        o(f"s_nop 1\nv_add_u32_dpp v{v}, v{v}, v{v} {m} bank_mask:0xf")


def mfma32(d, a, b, c=None):
    cs = vr(d, 16) if c is None else c
    return f"v_mfma_f32_32x32x16_bf16 {vr(d,16)}, {vr(a,4)}, {vr(b,4)}, {cs}"


def mfma16(d, a, b, c=None):
    cs = vr(d, 4) if c is None else c
    return f"v_mfma_f32_16x16x32_bf16 {vr(d,4)}, {vr(a,4)}, {vr(b,4)}, {cs}"


RS = 656
L_NODE = 0
L_WU = 50 * RS
L_XT = L_WU + 16384
L_HIST2 = L_XT + 8192
L_EAZ = L_HIST2 + 256
L_FLAG = L_EAZ + 8
L_TAG = L_EAZ + 16
L_LOFF = 57856
LSTR, LD = 528, 26624
SLOTS, NGMAX = 320, 512
L_EA2 = L_LOFF + 2 * LD
L_DL = L_EA2 + 16 * SLOTS * 8
DD = 2816
L_DN = L_DL + DD
L_CON = L_DN + DD
LDS = L_CON + 6144
L_HIST1 = L_LOFF
L_OFFS = L_HIST1 + 1024
L_SORT = L_OFFS + 1024
L_EA1 = L_SORT + CH * 8
L_W12 = L_EA1 + 26 * 1024
assert L_FLAG + 8 <= L_LOFF and LDS <= 163840 and L_W12 + 17408 <= L_DL and 50 * LSTR <= LD

DST, SRC, EAS, WS, XS, WM, WU, OUT, AT, ATS = 16, 20, 24, 28, 32, 36, 40, 44, 48, 52
sWave, sB, sXo, sSelE, sSelO, sRun, sK, sTag, sRedo, sRec = 6, 7, 8, 9, 10, 11, 12, 13, 14, 15
M0_, M1_ = 56, 58
sMask = 56
sBad = 72
sM49, sO4, sScale, sJx, sJw, sJb, sJg, sJr = 60, 61, 62, 63, 64, 65, 66, 67
sT0, sT1 = 74, 75
STAMP0 = 76

X = [8, 24, 40]
Z, T, OF = 56, 72, 88
AX, BXE, BXO = 96, 100, 104
Nn, Da, Db, Dk, CK = 108, 110, 112, 114, 116
LA, FA, LG, SL, DR, pH, pG, pR = 118, 120, 122, 123, 124, 125, 126, 127
cT, cC, cJ = 4, 5, 6
R0, R1 = T + 12, T + 14
vCon = 3


def gen():
    o = Asm()
    nst = [0]

    def st():
        if OPT["stamp"]:
            o(f"s_memrealtime {sr(STAMP0 + 2 * nst[0], 2)}")
            nst[0] += 1
            assert STAMP0 + 2 * nst[0] <= 102

    def restamp(i):
        if OPT["stamp"]:
            o(f"s_memrealtime {sr(STAMP0 + 2 * i, 2)}")

    vP, vD, vS, vWU = 7, 8, 12, 20
    o("s_cmp_ge_u32 s2, 256\ns_cbranch_scc1 L_end")
    st()
    o(f"""s_load_dwordx2 {sr(DST,2)}, s[0:1], 24
    s_load_dwordx2 {sr(SRC,2)}, s[0:1], 16
    s_load_dwordx2 {sr(EAS,2)}, s[0:1], 8
    s_load_dwordx2 {sr(WM,2)}, s[0:1], 32
    s_load_dwordx2 {sr(XS,2)}, s[0:1], 0
    s_load_dwordx2 {sr(WU,2)}, s[0:1], 40
    s_load_dwordx2 {sr(WS,2)}, s[0:1], 64
    s_load_dwordx2 {sr(OUT,2)}, s[0:1], 48
    v_lshrrev_b32 v1, 6, v0
    v_and_b32 v2, 63, v0
    v_readfirstlane_b32 s{sWave}, v1
    v_lshl_add_u32 v{vP}, v1, 7, v2
    s_mul_i32 s4, s2, {CH//2}
    s_sub_u32 s4, {E//2}, s4
    s_min_u32 s4, s4, {CH//2}
    v_add_u32 v16, 64, v{vP}
    v_cmp_gt_u32 {sr(M0_,2)}, s4, v{vP}
    v_cmp_gt_u32 {sr(M1_,2)}, s4, v16
    v_lshlrev_b32 v16, 3, v{vP}
    v_lshlrev_b32 v30, 2, v0
    v_mov_b32 v32, 0
    ds_write_b32 v30, v32 offset:{L_HIST1}
    s_mul_i32 s{sO4}, s2, {CH*4}
    s_mov_b32 s{DST+2}, {E*4}
    s_mov_b32 s{DST+3}, 0x20000
    s_mov_b32 s{SRC+2}, {E*4}
    s_mov_b32 s{SRC+3}, 0x20000
    s_lshl_b32 s{sT0}, s{sO4}, 1
    s_add_u32 s{EAS+2}, s{sT0}, {CH*8}
    s_min_u32 s{EAS+2}, s{EAS+2}, {E*8}
    s_mov_b32 s{EAS+3}, 0x20000
    s_mov_b32 s{WM+2}, {132*128}
    s_mov_b32 s{WM+3}, 0x20000
    s_mov_b32 s{XS+3}, 0x20000
    s_mov_b32 s{WU+2}, {128*128}
    s_mov_b32 s{WU+3}, 0x20000
    s_mov_b32 s{WS+2}, {WS_END}
    s_mov_b32 s{WS+3}, 0x20000
    s_and_b32 s{sB}, s2, 7
    s_lshl_b32 s{sB}, s{sB}, 5
    s_lshr_b32 s4, s2, 3
    s_add_u32 s{sB}, s{sB}, s4
    s_mul_i32 s{sXo}, s{sB}, {NPB*128}
    s_add_u32 s{OUT+2}, s{sXo}, {NPB*128}
    s_min_u32 s{OUT+2}, s{OUT+2}, {N*128}
    s_mov_b32 s{XS+2}, s{OUT+2}
    s_mov_b32 s{OUT+3}, 0x20000
    v_lshlrev_b32 v31, 4, v2
    v_lshlrev_b32 v41, 4, v{vP}
    s_cmp_ge_u32 s{sWave}, 13
    s_waitcnt lgkmcnt(0)
    s_cbranch_scc1 L_loader
    s_mov_b64 exec, {sr(M0_,2)}
    buffer_load_dwordx2 {vr(vD,2)}, v16, {sr(DST,4)}, s{sO4} offen
    s_mov_b64 exec, {sr(M1_,2)}
    buffer_load_dwordx2 {vr(vD+2,2)}, v16, {sr(DST,4)}, s{sO4} offen offset:512
    buffer_load_dwordx2 {vr(vS+2,2)}, v16, {sr(SRC,4)}, s{sO4} offen offset:512
    s_mov_b64 exec, {sr(M0_,2)}
    buffer_load_dwordx2 {vr(vS,2)}, v16, {sr(SRC,4)}, s{sO4} offen
    s_lshl_b32 s4, s{sWave}, 11
    s_add_u32 m0, s4, {L_EA1}
    s_movk_i32 s{sM49}, -{NPB}
    s_mov_b64 exec, -1
    v_mov_b32 v17, 1
    v_add_u32 v{vCon}, {L_CON}, v31
    s_cmp_lg_u32 s{sWave}, 1
    s_barrier
    s_cbranch_scc1 L_nocon""")
    o(f"""    v_lshrrev_b32 v48, 5, v2
    v_bfe_u32 v49, v2, 2, 2
    v_and_b32 v50, 1, v2
    v_bfe_u32 v51, v2, 2, 1
    v_and_b32 v52, 3, v2
    v_lshlrev_b32 v52, 3, v52
    v_and_b32 v53, 15, v2
    v_lshrrev_b32 v54, 4, v2
    v_and_b32 v55, 1, v54
    v_lshl_add_u32 v56, v55, 5, v52
    v_and_b32 v57, 31, v2
    v_lshlrev_b32 v57, 3, v57
    v_bfe_u32 v58, v2, 1, 1
    v_bfe_u32 v59, v2, 3, 2
    v_lshl_add_u32 v58, v59, 1, v58
    v_lshlrev_b32 v58, 2, v58
    v_mul_u32_u24 v59, 12, v53
    ds_write_b128 v{vCon}, v[56:59]
    v_mov_b32 v60, 0xbf80
    v_lshlrev_b32 v61, 4, v50
    v_lshlrev_b32 v62, v61, v60
    v_lshl_add_u32 v63, v48, 1, v51
    v_cmp_eq_u32 vcc, 0, v63
    v_cmp_eq_u32 s[4:5], 1, v63
    s_mov_b32 s3, {L_DL}
    v_lshl_add_u32 v65, v48, 3, s3
    v_cndmask_b32 v60, 0, v62, vcc
    v_cndmask_b32 v61, 0, v62, s[4:5]
    ds_write_b64 v{vCon}, v[60:61] offset:1024
    v_lshl_add_u32 v66, v51, 1, v50
    v_lshl_add_u32 v66, v66, 2, s3
    v_lshl_add_u32 v67, v49, 2, s3
    ds_write_b128 v{vCon}, v[64:67] offset:2048
    v_bfe_u32 v68, v2, 1, 3
    v_xor_b32 v68, v68, v54
    v_lshlrev_b32 v68, 4, v68
    v_lshl_add_u32 v68, v53, 7, v68
    v_lshl_add_u32 v76, v54, 3, v49
    v_lshl_add_u32 v72, v76, 7, v52
    v_bfe_u32 v69, v2, 3, 2
    v_lshl_add_u32 v69, v69, 5, v72
    v_lshlrev_b32 v70, 9, v54
    v_lshl_add_u32 v70, v53, 2, v70
    v_mul_u32_u24 v71, {4*RS}, v54
    v_lshl_add_u32 v71, v53, 1, v71
    ds_write_b128 v{vCon}, v[68:71] offset:3072
    v_lshl_add_u32 v73, v48, 11, v72
    v_mul_u32_u24 v74, {RS}, v53
    v_lshl_add_u32 v74, v54, 6, v74
    ds_write_b128 v{vCon}, v[72:75] offset:4096
    v_mul_u32_u24 v76, {LSTR}, v2
    v_add_u32 v76, {L_LOFF}, v76
    v_mul_u32_u24 v77, {RS}, v2
    ds_write_b64 v{vCon}, v[76:77] offset:{5120+8}
    v_lshlrev_b32 v77, 2, v2
    ds_write_b32 v77, v76 offset:{L_HIST2}
    v_mov_b32 v33, 0
    v_mov_b32 v34, 0
    v_mov_b32 v35, 0
    ds_write_b128 v32, v[32:35] offset:{L_EAZ}
    s_mov_b64 exec, 0xff
    ds_write_b128 v31, v[32:35] offset:{49*RS+512}
    s_mov_b64 exec, -1""")
    o("L_nocon:")
    ea = f"""s_mov_b64 exec, {sr(M0_,2)}
    buffer_load_dwordx4 v41, {sr(EAS,4)}, s{sT0} offen lds
    s_mov_b64 exec, {sr(M1_,2)}
    buffer_load_dwordx4 v41, {sr(EAS,4)}, s{sT0} offen offset:1024 lds
    s_mov_b64 exec, -1
"""
    vA, vR, vPair, vOne = 32, 36, 40, 17
    common = f"""s_add_u32 s{AT}, s{WS}, {WS_AT}
    s_addc_u32 s{AT+1}, s{WS+1}, 0
    s_mov_b32 s{ATS}, s{AT}
    s_mov_b32 s{ATS+1}, s{AT+1}
    s_or_b32 s{AT+1}, s{AT+1}, 0x80000000
    s_mov_b32 s{AT+2}, {2*NROW*128}
    s_mov_b32 s{AT+3}, 0x00c00000
    s_mov_b32 s{ATS+3}, 0x20000
    s_mov_b32 s{sRedo}, 0
    s_bfe_u32 s4, s{sWave}, 0x20001
    s_and_b32 s5, s{sWave}, 1
    s_lshr_b32 s3, s{sWave}, 3
    s_lshl_b32 s{sJr}, s4, 4
    s_lshl_b32 s{sJx}, s4, 11
    s_lshl_b32 s{sJw}, s3, 13
    s_add_u32 s{sJw}, s{sJw}, {L_W12}
    s_mul_i32 s{sJb}, s4, {16*RS}
    s_lshl_b32 s5, s5, 5
    s_add_u32 s{sJb}, s{sJb}, s5
    s_lshl_b32 s{sT1}, s5, 1
    s_lshl_b32 s{sScale}, s3, 31
    s_xor_b32 s{sScale}, s{sScale}, {NLOG2E}
    s_mul_i32 s3, s3, {NROW*128}
    s_add_u32 s3, s3, s{sXo}
    s_add_u32 s{ATS+2}, s3, {NPB*128}
    s_add_u32 s{sJg}, s3, s{sJx}
    s_add_u32 s{sJg}, s{sJg}, s{sT1}"""
    o(common)
    o("s_waitcnt vmcnt(2)")
    vJ, jX, jW, jA = 88, 56, 64, 80
    jobrd = f"ds_read_b128 {vr(vJ,4)}, v{vCon} offset:3072"
    jobad = f"""s_waitcnt lgkmcnt(0)
    v_add_u32 v{vJ}, s{sJx}, v{vJ}
    v_xor_b32 v{vJ+1}, s{sT1}, v{vJ+1}
    v_xor_b32 v92, 64, v{vJ}
    v_add_u32 v{vJ+1}, s{sJw}, v{vJ+1}
    v_xor_b32 v93, 32, v{vJ+1}"""
    st()
    for i in range(4):
        o(f"""v_mul_u32_u24 v{vA+i}, {MAGIC}, v{vD+i}
        v_lshrrev_b32 v{20+i}, {MSHIFT}, v{vA+i}
        v_lshlrev_b32 v{vA+i}, 2, v{20+i}""")
        if i == 1:
            o(f"""s_mov_b64 exec, {sr(M0_,2)}
            ds_add_rtn_u32 v{vR}, v{vA}, v{vOne} offset:{L_HIST1}
            ds_add_rtn_u32 v{vR+1}, v{vA+1}, v{vOne} offset:{L_HIST1}
            s_mov_b64 exec, {sr(M1_,2)}""")
    o(f"""ds_add_rtn_u32 v{vR+2}, v{vA+2}, v{vOne} offset:{L_HIST1}
    ds_add_rtn_u32 v{vR+3}, v{vA+3}, v{vOne} offset:{L_HIST1}
    {ea if OPT["eapos"] == 0 else "s_mov_b64 exec, -1"}
    s_cmp_lg_u32 s{sWave}, 0
    s_waitcnt lgkmcnt(0)
    s_barrier""")
    st()
    vC, vO = 48, 52
    o(f"""s_cbranch_scc1 L_noscan
    ds_read_b128 {vr(vC,4)}, v31 offset:{L_HIST1}
    s_waitcnt lgkmcnt(0)
    v_add_u32 v{vO+2}, v{vC}, v{vC+1}
    v_add_u32 v{vO+3}, v{vO+2}, v{vC+2}
    v_add_u32 v18, v{vO+3}, v{vC+3}
    v_mov_b32 v19, v18""")
    dpp_scan(o, 19)
    o(f"""v_sub_u32 v{vO}, v19, v18
    v_add_u32 v{vO+1}, v{vO}, v{vC}
    v_add_u32 v{vO+2}, v{vO}, v{vO+2}
    v_add_u32 v{vO+3}, v{vO}, v{vO+3}
    ds_write_b128 v31, {vr(vO,4)} offset:{L_OFFS}
    s_waitcnt lgkmcnt(0)
    s_barrier
    L_noscan:""")
    if OPT["eapos"] == 1:
        o(ea)
    o(jobrd)
    for i in (3, 2, 1, 0):
        o(f"v_add_u32 v{vPair+2*i+1}, {L_EA1 + 8*(i&1) + 1024*(i>>1)}, v{vPair+1}")
    o("s_waitcnt vmcnt(2)")
    for i in range(4):
        o(f"""v_mad_i32_i24 v{vD+i}, v{20+i}, s{sM49}, v{vD+i}
        v_lshlrev_b32 v{vS+i}, 2, v{vS+i}
        v_lshl_or_b32 v{vPair+2*i}, v{vD+i}, 18, v{vS+i}""")
    o(jobad)
    o("s_cbranch_scc0 L_scanned\ns_barrier\nL_scanned:")
    st()
    for i in range(4):
        o(f"ds_read_b32 v{vA+i}, v{vA+i} offset:{L_OFFS}")
    for i in range(4):
        o(f"s_waitcnt lgkmcnt({3-i})\nv_add_lshl_u32 v{vA+i}, v{vA+i}, v{vR+i}, 3")
    for i in range(4):
        if i % 2 == 0:
            o(f"s_mov_b64 exec, {sr((M0_, M1_)[i//2],2)}")
        o(f"ds_write_b64 v{vA+i}, {vr(vPair+2*i,2)} offset:{L_SORT}")
    o("s_mov_b64 exec, -1")
    o(f"""L_join:
    ds_read_b128 {vr(jX,4)}, v{vJ} offset:{L_XT}
    ds_read_b128 {vr(jX+4,4)}, v92 offset:{L_XT}""")
    for t in range(2):
        for s in range(2):
            for u in range(2):
                o(f"ds_read_b64_tr_b16 {vr(jW + 8*t + 4*s + 2*u, 2)}, v{(vJ+1, 93)[t]} offset:{s*4096 + u*512}")
    o("s_waitcnt lgkmcnt(4)")
    o([mfma16(jA, jX, jW, "0"), mfma16(jA, jX + 4, jW + 4), "s_waitcnt lgkmcnt(0)",
       mfma16(jA + 4, jX, jW + 8, "0"), mfma16(jA + 4, jX + 4, jW + 12)])
    o(f"""s_mov_b32 s3, 0x07060100
    v_lshlrev_b32 v18, 3, v0
    v_add_u32 v18, {L_SORT}, v18
    v_mul_u32_u24 v19, 12, v0
    s_mul_i32 s{sRec}, s2, {RECB}
    s_add_u32 s{sRec}, s{sRec}, {WS_REC}
    s_add_u32 s4, s{sRec}, 12288
    s_add_u32 s5, s{sRec}, 24576
    s_cmp_lt_u32 s{sWave}, 8""")
    for q in range(8):
        o(f"v_mul_f32 v{jA+q}, s{sScale}, v{jA+q}")
    for r in range(4):
        o(f"""v_cvt_pk_bf16_f32 v{jX+r}, v{jA+r}, v{jA+4+r}
        v_perm_b32 v{jX+4+r}, v{jA+4+r}, v{jX+r}, s3""")
    o("s_cbranch_scc0 L_bt")
    for r in range(4):
        o(f"buffer_store_dword v{jX+4+r}, v{vJ+2}, {sr(ATS,4)}, s{sJg} offen offset:{r*128} sc1")
    o(f"""s_branch L_jobdone
    L_bt:""")
    for r in range(4):
        o(f"buffer_store_dword v{jX+4+r}, v{vJ+2}, {sr(ATS,4)}, s{sJg} offen offset:{r*128}{' sc1' if OPT['bsc'] else ''}")
    o(f"""v_add_u32 v{vJ+3}, s{sJb}, v{vJ+3}
    s_cmp_lt_u32 s{sWave}, 14
    s_cselect_b64 exec, -1, 0xffff""")
    for r in range(4):
        o(f"""ds_write_b16 v{vJ+3}, v{jX+r} offset:{512 + r*RS}
        ds_write_b16_d16_hi v{vJ+3}, v{jX+r} offset:{576 + r*RS}""")
        if r == 0:
            o("s_cbranch_scc0 L_btdone")
    o(f"""L_btdone:
    s_mov_b64 exec, -1
    s_cmp_lg_u32 s{sWave}, 15
    s_cbranch_scc1 L_jobdone
    v_and_b32 v8, 0x1ff, v{vJ+1}
    v_xor_b32 v8, 64, v8
    v_add_u32 v8, {L_W12 + 128*128}, v8
    v_xor_b32 v9, 32, v8
    ds_read_b64_tr_b16 v[24:25], v8
    ds_read_b64_tr_b16 v[26:27], v9
    L_jobdone:""")
    o(f"""s_cmp_lg_u32 s{sWave}, 0
    s_waitcnt vmcnt(4) lgkmcnt(0)
    s_barrier""")
    st()
    vOut = 32
    for k in range(3):
        o(f"ds_read_b64 {vr(vOut+4*k+2,2)}, v18 offset:{8192*k}")
    for k in range(3):
        o(f"s_waitcnt lgkmcnt(2)\nds_read_b64 {vr(vOut+4*k,2)}, v{vOut+4*k+3}")
    for k, s in enumerate((sRec, 4, 5)):
        o(f"""s_waitcnt lgkmcnt({2-k})
        buffer_store_dwordx3 {vr(vOut+4*k,3)}, v19, {sr(WS,4)}, s{s} offen sc1""")
    o(f"""s_cbranch_scc1 L_notail
    ds_read_b64 {vr(vOut+14,2)}, v18 offset:24576
    s_add_u32 s5, s{sRec}, 36864
    s_waitcnt lgkmcnt(0)
    ds_read_b64 {vr(vOut+12,2)}, v{vOut+15}
    s_waitcnt lgkmcnt(0)
    buffer_store_dwordx3 {vr(vOut+12,3)}, v19, {sr(WS,4)}, s5 offen sc1
    L_notail:""")
    vWb, vTa = 89, 90
    o(f"""v_mov_b32 v11, 0
    ds_read_b32 v10, v11 offset:{L_TAG}
    s_cmp_lg_u32 s{sWave}, 0
    s_waitcnt lgkmcnt(0)
    v_readfirstlane_b32 s{sTag}, v10
    s_cbranch_scc1 L_notabw""")
    for i in range(4):
        o(f"v_mov_b32 v{9+2*i}, v10")
    for i in range(4):
        o(f"v_lshl_or_b32 v{8+2*i}, v{vC+i}, 16, v{vO+i}")
    o(f"""v_and_b32 v16, 7, v2
    v_lshlrev_b32 v16, 5, v16
    v_lshrrev_b32 v17, 3, v2
    v_lshl_add_u32 v16, v17, 16, v16
    L_notabw:""")
    st()
    o(f"ds_read_b128 {vr(cT,4)}, v{vCon}")
    if OPT["xmap"]:
        o(f"""v_bfe_u32 v17, v0, 2, 5
        s_lshr_b32 s5, s{sWave}, 1
        v_lshl_add_u32 v17, v17, 3, s5""")
    else:
        o("v_lshrrev_b32 v17, 2, v0")
    o(f"""s_mov_b32 s5, {RECB}
    v_mul_lo_u32 v{vWb}, v17, s5
    v_lshlrev_b32 v{vTa}, 8, v17
    v_and_b32 v91, 15, v2
    v_lshlrev_b32 v18, 4, v0
    s_lshl_b32 s4, s2, 8
    s_add_u32 s4, s4, {WS_TAB}
    s_and_b32 s{sT0}, s2, 7
    s_lshl_b32 s{sT0}, s{sT0}, 16
    s_andn2_b32 s3, s2, 7
    s_add_u32 s{sT0}, s{sT0}, s3
    s_add_u32 s{sT0}, s{sT0}, {WS_TAB}
    s_mov_b32 s{sT1}, 0xf000f000
    s_mov_b32 s5, {WS_REC}
    s_cmp_lg_u32 s{sWave}, 0
    s_waitcnt vmcnt(0) lgkmcnt(0)
    s_barrier
    s_cbranch_scc1 L_notab
    buffer_store_dwordx4 v[8:11], v16, {sr(WS,4)}, s4 offen sc1
    buffer_store_dwordx4 v[12:15], v16, {sr(WS,4)}, s4 offen offset:16 sc1
    L_notab:
    buffer_load_dwordx4 {vr(vWU,4)}, v18, {sr(WU,4)}, 0 offen""")
    st()
    o(f"""s_cmp_ge_u32 s{sWave}, 13
    s_cbranch_scc1 L_nofill
    v_lshrrev_b32 v28, 4, v0
    v_cmp_gt_u32 vcc, 50, v28
    v_mul_u32_u24 v28, {RS}, v28
    v_lshl_add_u32 v28, v91, 5, v28
    v_mov_b32 v32, 0
    v_mov_b32 v33, 0
    v_mov_b32 v34, 0
    v_mov_b32 v35, 0
    s_mov_b64 exec, vcc
    ds_write_b128 v28, v[32:35]
    ds_write_b128 v28, v[32:35] offset:16
    v_cmp_gt_u32 vcc, {DD//4}, v0
    v_mov_b32 v38, {L_LOFF + 49*LSTR}
    v_mov_b32 v39, {49*RS}
    v_add_u32 v37, {L_DL}, v30
    s_mov_b64 exec, vcc
    ds_write2st64_b32 v37, v38, v39 offset0:0 offset1:{DD//256}
    s_mov_b64 exec, -1
    s_branch L_filled
    L_nofill:
    s_cmp_lg_u32 s{sWave}, 15
    s_cbranch_scc1 L_filled
    s_mov_b32 s4, {NLOG2E}
    v_cmp_lt_u32 vcc, 31, v2""")
    for i in range(4):
        o(f"""v_lshlrev_b32 v8, 16, v{24+i}
        v_and_b32 v9, 0xffff0000, v{24+i}
        v_mul_f32 v8, s4, v8
        v_mul_f32 v9, s4, v9
        v_cvt_pk_bf16_f32 v10, v8, v9
        v_lshlrev_b32 v11, 16, v10
        v_and_b32 v12, 0xffff0000, v10
        v_sub_f32 v11, v8, v11
        v_sub_f32 v12, v9, v12
        v_cvt_pk_bf16_f32 v11, v11, v12
        v_cndmask_b32 v{24+i}, v10, v11, vcc""")
    o(f"""ds_write_b64 v{vCon}, v[24:25] offset:{1024+8}
    ds_write_b64 v{vCon}, v[26:27] offset:5120
    v_lshlrev_b32 v8, 2, v2
    v_add_u32 v8, {L_LOFF + 49*LSTR}, v8
    v_mov_b32 v9, {(NROW-1)*4}
    v_mov_b32 v10, {L_EAZ}
    ds_write2st64_b32 v8, v9, v10 offset0:0 offset1:{LD//256}
    L_filled:
    s_mov_b32 s3, 0x100000""")
    vTab = 92
    o("L_poll:")
    o(f"""buffer_load_dwordx2 {vr(vTab,2)}, v{vTa}, {sr(WS,4)}, s{sT0} offen sc1
    s_waitcnt vmcnt(0)
    v_xor_b32 v24, s{sTag}, v{vTab+1}
    v_and_or_b32 v24, v{vTab}, s{sT1}, v24
    v_cmp_ne_u32 vcc, 0, v24
    s_and_b64 exec, exec, vcc
    s_cbranch_scc0 L_polled""")
    if OPT["sleep"]:
        o(f"s_sleep {OPT['sleep']}")
    o(f"""s_sub_u32 s3, s3, 1
    s_cbranch_scc0 L_poll
    s_endpgm
    L_polled:
    s_mov_b64 exec, -1""")
    st()
    vRec, vGa, vRem = 24, 8, 12
    o(f"""v_and_b32 v{vTab+1}, 0xffff, v{vTab}
    v_lshrrev_b32 v{vTab}, 16, v{vTab}
    v_mad_u32_u24 v{vTab+1}, v{vTab+1}, 12, v{vWb}
    v_cmp_lt_u32 {sr(sBad,2)}, 32, v{vTab}""")
    for it in range(4):
        o(f"v_sub_u32_dpp v{vRem+it}, v{vTab}, v91 row_newbcast:{4*it} row_mask:0xf bank_mask:0xf")
    for it in range(4):
        o(f"""v_add_u32_dpp v{vGa+it}, v{vTab+1}, v7 row_newbcast:{4*it} row_mask:0xf bank_mask:0xf
        v_cmp_lt_i32 {sr(sMask+8+2*it,2)}, 16, v{vRem+it}
        v_cmp_lt_i32 {sr(sMask+2*it,2)}, 0, v{vRem+it}""")
    for it in range(4):
        o(f"""s_mov_b64 exec, {sr(sMask+8+2*it,2)}
        s_cbranch_execz L_nl{it}
        buffer_load_dwordx3 {vr(vRec+16+4*it,3)}, v{vGa+it}, {sr(WS,4)}, s5 offen offset:192
        L_nl{it}:""")
    for it in range(4):
        o(f"""s_mov_b64 exec, {sr(sMask+2*it,2)}
        buffer_load_dwordx3 {vr(vRec+4*it,3)}, v{vGa+it}, {sr(WS,4)}, s5 offen""")
    vIni, vNa = BXO + 2, BXO + 3
    o(f"""s_mov_b64 exec, -1
    ds_read_b128 {vr(DR,4)}, v{vCon} offset:2048
    ds_read_b64 {vr(BXO+2,2)}, v{vCon} offset:{5120+8}
    s_mul_i32 s{sRun}, s{sWave}, {SLOTS*8}
    s_add_u32 s{sRun}, s{sRun}, {L_EA2}
    v_lshl_add_u32 v{vRec+3}, v2, 3, s{sRun}""")
    for it in range(1, 4):
        o(f"v_add_u32 v{vRec+4*it+3}, {512*it}, v{vRec+3}")
    o(f"s_lshr_b32 s{sRun}, s{sRun}, 3\ns_add_u32 s{sRun}, s{sRun}, 256\ns_add_u32 s5, s{sRun}, {SLOTS-256}")
    for it in range(4):
        m, w = sMask + 8 + 2 * it, vRec + 16 + 4 * it
        o(f"""s_bcnt1_i32_b64 s4, {sr(m,2)}
        s_cbranch_scc0 L_ns{it}
        v_mbcnt_lo_u32_b32 v{w+3}, s{m}, 0
        v_mbcnt_hi_u32_b32 v{w+3}, s{m+1}, v{w+3}
        v_add_lshl_u32 v{w+3}, v{w+3}, s{sRun}, 3
        s_add_u32 s{sRun}, s{sRun}, s4
        L_ns{it}:""")
    o(f"""s_mov_b32 s{sSelE}, 0x05040100
    s_mov_b32 s{sSelO}, 0x07060302
    v_lshrrev_b32 v16, 3, v0
    v_lshlrev_b32 v16, 7, v16
    v_and_b32 v17, 7, v0
    v_lshl_add_u32 v16, v17, 3, v16
    v_perm_b32 v8, v{vWU+1}, v{vWU}, s{sSelE}
    v_perm_b32 v9, v{vWU+3}, v{vWU+2}, s{sSelE}
    v_perm_b32 v10, v{vWU+1}, v{vWU}, s{sSelO}
    v_perm_b32 v11, v{vWU+3}, v{vWU+2}, s{sSelO}
    ds_write_b64 v16, v[8:9] offset:{L_WU}
    ds_write_b64 v16, v[10:11] offset:{L_WU+64}
    s_cmp_gt_u32 s{sRun}, s5
    s_cselect_b32 s4, 1, 0
    s_or_b32 s4, s4, s{sBad}
    s_or_b32 s4, s4, s{sBad+1}
    v_mov_b32 v19, 0
    v_mov_b32 v20, 4
    s_cbranch_scc0 L_ok1
    ds_write_b32 v19, v20 offset:{L_FLAG}
    s_mov_b64 {sr(sMask+8,2)}, 0
    s_mov_b64 {sr(sMask+10,2)}, 0
    s_mov_b64 {sr(sMask+12,2)}, 0
    s_mov_b64 {sr(sMask+14,2)}, 0
    L_ok1:
    v_lshlrev_b32 v18, 2, v2
    v_mov_b32 v{CK}, 0
    v_mov_b32 v{CK+1}, 0""")
    o(f"""s_lshl_b32 s4, s{sWave}, 4
    s_lshl_b32 s5, s{sWave}, 5
    s_add_u32 s{sT0}, s{sWave}, {L_DL//4}
    s_waitcnt lgkmcnt(0)
    v_add_u32 v{pH}, s4, v{pH}
    v_add_u32 v{pG}, s4, v{pG}
    v_add_u32 v{pR}, s4, v{pR}
    v_add_u32 v22, s5, v{vIni}
    v_subrev_u32 v{vIni}, 28, v{vIni}
    s_mul_i32 s4, s{sB}, {NPB}
    s_add_u32 s4, s4, {NROW}
    v_add_lshl_u32 v16, v2, s4, 2
    v_mov_b32 v17, {L_EAZ}
    s_lshl_b32 s{sT1}, s{sWave}, 2
    s_sub_u32 s{sRun}, 28, s{sT1}""")
    vRank = 8
    for r in range(8):
        w = vRec + 4 * r
        o(f"s_mov_b64 exec, {sr(sMask+2*r,2)}")
        o(f"s_waitcnt vmcnt({3-r})" if r < 4 else f"s_cbranch_execz L_np{r}")
        o(f"""v_lshrrev_b32 v21, 16, v{w+2}
        ds_add_rtn_u32 v{vRank+r}, v21, v20 offset:{L_HIST2}
        ds_write_b64 v{w+3}, {vr(w,2)}
        v_and_b32 v{w+2}, 0xffff, v{w+2}""")
        if r >= 4:
            o(f"L_np{r}:")
    o("s_waitcnt lgkmcnt(0)")
    for r in range(8):
        w = vRec + 4 * r
        o(f"s_mov_b64 exec, {sr(sMask+2*r,2)}")
        if r >= 4:
            o(f"s_cbranch_execz L_nq{r}")
        o(f"ds_write2st64_b32 v{vRank+r}, v{w+2}, v{w+3} offset0:0 offset1:{LD//256}")
        if r >= 4:
            o(f"L_nq{r}:")
    o(f"""s_mov_b64 exec, -1
    s_waitcnt lgkmcnt(0)
    s_barrier""")
    st()
    o(f"""ds_read_b32 v11, v18 offset:{L_HIST2}
    ds_read_b32 v9, v19 offset:{L_FLAG}
    ds_read_b128 {vr(AX+2,4)}, v{vCon} offset:1024
    ds_read_b64 {vr(BXO,2)}, v{vCon} offset:5120
    s_waitcnt lgkmcnt(3)
    v_sub_u32 v12, v11, v{vIni}
    v_lshrrev_b32 v8, 5, v12
    v_mov_b32 v10, v8
    v_and_b32 v12, 31, v12
    v_add_u32 v11, s{sT1}, v11
    v_cmp_gt_i32 {sr(sMask,2)}, s{sRun}, v12""")
    dpp_scan(o, 10)
    o(f"""v_cmp_lt_u32 vcc, s{sWave}, v8
    v_cmp_lt_u32 {sr(sBad,2)}, 16, v8
    v_sub_u32 v8, v10, v8
    v_readlane_b32 s{sK}, v10, 63
    v_add_lshl_u32 v8, v8, s{sT0}, 2
    s_waitcnt lgkmcnt(0)
    v_readfirstlane_b32 s4, v9
    s_or_b32 s5, s{sBad}, s{sBad+1}
    s_or_b32 s4, s4, s5
    s_cbranch_scc1 L_slow
    s_cmp_gt_u32 s{sK}, {NGMAX}
    s_cbranch_scc1 L_slow
    s_mov_b64 exec, vcc
    ds_write2st64_b32 v8, v22, v{vNa} offset0:0 offset1:{DD//256}
    s_mov_b64 exec, {sr(sMask,2)}
    ds_write2st64_b32 v11, v16, v17 offset0:0 offset1:{LD//256}
    s_mov_b64 exec, -1
    s_add_u32 s{sK}, s{sK}, 63
    s_lshr_b32 s{sK}, s{sK}, 2
    s_sub_u32 s{sK}, s{sK}, s{sWave}
    s_lshr_b32 s{sK}, s{sK}, 4
    s_waitcnt lgkmcnt(0)
    s_barrier""")
    st()
    o(f"s_cmp_eq_u32 s{sK}, 0\ns_cbranch_scc1 L_post")

    def PF(d, a, b, c):
        return f"v_pk_fma_f32 {vr(d,2)}, {vr(a,2)}, {vr(b,2)}, {vr(c,2)}"

    def chain(Y, dfin, rr, filler):
        r = [f"v_pk_add_f32 {vr(Da,2)}, {vr(T,2)}, 1.0 op_sel_hi:[1,0]"]
        cur = Da
        for i in range(1, 8):
            nxt = dfin if i == 7 else (Db if cur == Da else Da)
            src = Y if i == 1 else Nn
            r += [PF(Nn, src, T + 2 * i, src), PF(nxt, cur, T + 2 * i, cur), PF(Nn, Y + 2 * i, cur, Nn)]
            cur = nxt
        r += [f"v_rcp_f32 v{rr}, v{dfin}", f"v_rcp_f32 v{rr+1}, v{dfin+1}", filler,
              f"v_pk_mul_f32 {vr(rr,2)}, {vr(Nn,2)}, {vr(rr,2)}",
              f"v_cvt_f64_f32 {vr(R0,2)}, v{rr}", f"v_cvt_f64_f32 {vr(R1,2)}, v{rr+1}"]
        return r

    def exps(Y):
        return [f"v_exp_f32 v{T+i}, v{Y+i}" for i in range(16)]

    def flush(off):
        return [f"ds_add_f64 v{FA}, {vr(R0,2)} offset:{off}", f"ds_add_f64 v{FA+1}, {vr(R1,2)} offset:{off}"]

    def loads(x, par, of=OF):
        r = [f"v_and_b32 v{of+j}, 0x1fffc, v{of+j}" for j in range(8)] if OPT["safe"] else []
        return r + [f"buffer_load_dword v{x+2*j+par}, v{of+j}, {sr(AT,4)}, 0 offen" for j in range(8)]

    def ofr(la, of=OF):
        return [f"ds_read_b128 {vr(of,4)}, v{la}", f"ds_read_b128 {vr(of+4,4)}, v{la} offset:16"]

    def small():
        return [f"ds_read_b64 {vr(AX,2)}, v{SL}", f"ds_read_b64_tr_b16 {vr(BXE+2,2)}, v{DR} offset:512",
                f"ds_read_b64_tr_b16 {vr(BXO+2,2)}, v{DR} offset:576"]

    def shifts(x):
        return [f"v_lshlrev_b64 {vr(Z+2*i,2)}, 16, {vr(x+2*i,2)}" for i in range(8)]

    if OPT["prio"]:
        o("s_setprio 1")
    o(f"""ds_read_b64 {vr(Nn,2)}, v{pH}
    ds_read_b32 v{LG}, v{pG}
    ds_read_b64 {vr(Da,2)}, v{pH} offset:256
    ds_read_b32 v{DR}, v{pR} offset:{DD}
    ds_read_b32 v{Db}, v{pG} offset:256
    ds_read_b64 {vr(LA,2)}, v{pH} offset:512
    ds_read_b64 {vr(FA,2)}, v{pH} offset:{DD}
    s_waitcnt lgkmcnt(5)
    v_add_u32 v{LG}, v{LG}, v{cJ}""")
    o(ofr(Nn, T) + ofr(Nn + 1, T + 8) + [f"ds_read_b32 v{SL}, v{LG} offset:{LD}", "s_waitcnt lgkmcnt(7)"])
    o(ofr(Da, Z) + ofr(Da + 1, Z + 8))
    o(f"v_add_u32 v{DR}, v{DR}, v{cT}\nv_add_u32 v{LG}, v{Db}, v{cJ}\ns_waitcnt lgkmcnt(4)")
    o(loads(X[0], 0, T) + loads(X[0], 1, T + 8) + small())
    o(f"s_waitcnt lgkmcnt(3)\ns_cmp_lt_u32 s{sK}, 2\ns_cbranch_scc1 L_pro1")
    o(loads(X[1], 0, Z) + loads(X[1], 1, Z + 8))
    o(f"s_waitcnt vmcnt(16)\ns_branch L_pro2\nL_pro1:\ns_waitcnt vmcnt(0)\nL_pro2:")
    o(ofr(LA) + [f"ds_read_b32 v{SL}, v{LG} offset:{LD}", f"ds_read_b32 v{DR}, v{pR} offset:{DD+256}"])
    o(shifts(X[0]) + [f"v_mov_b32 v{R0+i}, 0" for i in range(4)] + ["s_waitcnt lgkmcnt(4)"])
    o([mfma32(Z, AX, BXE), mfma32(X[0], AX, BXO), f"v_add_u32 v{FA}, v{FA}, v{cC}", f"v_add_u32 v{FA+1}, v{FA+1}, v{cC}", "s_nop 9"])
    st()
    o(".p2align 6\nL_loop:")
    for u in range(3):
        xc, xn, xf = X[u], X[(u + 1) % 3], X[(u + 2) % 3]
        eZ, eX = exps(Z), exps(xc)
        o(eZ[:6])
        o(["s_waitcnt lgkmcnt(0)", f"v_add_u32 v{DR}, v{DR}, v{cT}"] + flush(256))
        o(f"ds_read_b64 {vr(FA,2)}, v{pH} offset:{DD + 256*u}")
        o(small())
        o(f"s_cmp_lt_u32 s{sK}, 3\ns_cbranch_scc1 L_a{u}")
        o(loads(xf, 0))
        o(f"L_a{u}:")
        o(ofr(LA + 1) + [f"ds_read_b64 {vr(LA,2)}, v{pH} offset:{256*(u+3)}", f"ds_read_b32 v{LG}, v{pG} offset:{256*(u+2)}"])
        o(eZ[6:])
        c = chain(Z, Dk, Db, "s_waitcnt vmcnt(8) lgkmcnt(0)")
        o(c)
        o(f"s_cbranch_scc0 L_b{u}\ns_waitcnt vmcnt(0)\nL_b{u}:")
        o(shifts(xn) + [mfma32(xn, AX, BXO)] + eX[:3] + [mfma32(Z, AX, BXE)] + eX[3:6])
        o([f"v_add_u32 v{FA}, v{FA}, v{cC}", f"v_add_u32 v{FA+1}, v{FA+1}, v{cC}", f"v_add_u32 v{LG}, v{LG}, v{cJ}"] + eX[6:8])
        o(flush(0))
        o(f"s_cbranch_scc1 L_c{u}")
        o(loads(xf, 1))
        if OPT["prio"]:
            o(f"s_branch L_d{u}\nL_c{u}:\ns_setprio 0\nL_d{u}:")
        else:
            o(f"L_c{u}:")
        o(ofr(LA) + [f"ds_read_b32 v{SL}, v{LG} offset:{LD}", f"ds_read_b32 v{DR}, v{pR} offset:{DD + 256*(u+2)}"])
        o(f"s_sub_u32 s{sK}, s{sK}, 1\ns_cmp_lg_u32 s{sK}, 0")
        o(eX[8:])
        if u == 2:
            o([f"v_add_u32 v{p}, 0x300, v{p}" for p in (pH, pG, pR)])
        o(chain(xc, Db, Da, PF(CK, Dk, Db, CK)))
        o("s_cbranch_scc0 L_done" if u < 2 else "s_cbranch_scc1 L_loop")
    o("L_done:")
    o(flush(256))
    o(f"""s_mov_b32 s4, {f32(2.0**120)}
    v_add_f32 v{CK}, v{CK}, v{CK+1}
    v_cmp_ngt_f32 vcc, s4, v{CK}
    s_waitcnt lgkmcnt(0)
    v_mov_b32 v{OF}, 0
    v_mov_b32 v{OF+1}, 4
    s_mov_b64 exec, vcc
    ds_write_b32 v{OF}, v{OF+1} offset:{L_FLAG}
    s_mov_b64 exec, -1""")
    eX_, eW, eA, eAcc, eAg, eG = 8, 16, 48, 56, 64, 72
    o("L_post:")
    st()
    o(f"""s_or_b32 s4, s2, s{sWave}
    s_cbranch_scc1 L_nox
    v_mov_b32 v8, 0
    v_mov_b32 v9, s{sTag}
    s_mov_b64 exec, 1
    buffer_store_dword v9, v8, {sr(WS,4)}, 0 offen sc1
    s_mov_b64 exec, -1
    L_nox:
    s_cmp_ge_u32 s{sWave}, 8
    s_cbranch_scc1 L_ewait
    ds_read_b128 v[104:107], v{vCon} offset:3072
    ds_read_b128 v[108:111], v{vCon} offset:4096
    s_lshr_b32 s4, s{sWave}, 1
    s_and_b32 s5, s{sWave}, 1
    s_lshl_b32 s5, s5, 5
    s_lshl_b32 s{sT0}, s4, 11
    s_mul_i32 s{sT1}, s4, {16*RS}
    s_lshl_b32 s3, s5, 1
    s_add_u32 s3, s3, s{sXo}
    s_add_u32 s3, s3, s{sT0}
    s_waitcnt lgkmcnt(0)
    v_add_u32 v104, s{sT0}, v104
    v_add_u32 v108, s5, v108
    v_add_u32 v109, s5, v109
    v_xor_b32 v105, 64, v104
    ds_read_b128 {vr(eX_,4)}, v104 offset:{L_XT}
    ds_read_b128 {vr(eX_+4,4)}, v105 offset:{L_XT}""")
    for t in range(2):
        for s in range(2):
            for u in range(2):
                o(f"ds_read_b64_tr_b16 {vr(eW + 16*t + 4*s + 2*u, 2)}, v108 offset:{L_WU + s*4096 + u*512 + t*64}")
    o(f"""v_add_u32 v111, s{sT1}, v110
    s_cmp_lt_u32 s{sWave}, 6
    s_cselect_b64 {sr(56,2)}, -1, 0xffff
    s_cselect_b64 {sr(58,2)}, -1, 0
    s_waitcnt lgkmcnt(0)""")
    for t in range(2):
        for s in range(2):
            for u in range(2):
                o(f"ds_read_b64_tr_b16 {vr(eW + 16*t + 8 + 4*s + 2*u, 2)}, v109 offset:{L_WU + (64+16*s)*128 + u*512 + t*64}")
    for t in range(2):
        for s in range(2):
            o(mfma16(eAcc + 4 * t, eX_ + 4 * s, eW + 16 * t + 4 * s, "0" if s == 0 else None))
    o("s_waitcnt lgkmcnt(0)\ns_barrier")
    st()
    for s in range(2):
        for u in range(4):
            o(f"ds_read_b128 {vr(eG + 16*s + 4*u, 4)}, v111 offset:{s*256 + u*16}")
    for s in range(2):
        for u in range(4):
            g = eG + 16 * s + 4 * u
            o(f"""s_waitcnt lgkmcnt({7 - 4*s - u})
            v_cvt_f32_f64 v{g}, {vr(g,2)}
            v_cvt_f32_f64 v{g+2}, {vr(g+2,2)}
            v_cvt_pk_bf16_f32 v{eA+4*s+u}, v{g}, v{g+2}""")
    o(f"s_mov_b32 s4, {NLN2}\ns_mov_b32 s5, {NLOG2E}")
    for s in range(2):
        for t in range(2):
            o(mfma16(eAg + 4 * t, eA + 4 * s, eW + 16 * t + 8 + 4 * s, "0" if s == 0 else None))
    o("s_nop 7")
    for i in range(8):
        o(f"v_fmac_f32 v{eAcc+i}, s4, v{eAg+i}")
    for i in range(8):
        o(f"v_mul_f32 v{eG+i}, s5, v{eAcc+i}")
    for i in range(8):
        o(f"v_exp_f32 v{eG+i}, v{eG+i}")
    for i in range(8):
        o(f"v_add_f32 v{eG+i}, 1.0, v{eG+i}")
    for i in range(8):
        o(f"v_rcp_f32 v{eG+i}, v{eG+i}")
    for i in range(8):
        o(f"v_mul_f32 v{eG+i}, v{eAcc+i}, v{eG+i}")
    for r in range(4):
        o(f"""v_cvt_pk_bf16_f32 v{eA+r}, v{eG+r}, v{eG+4+r}
        buffer_store_dword v{eA+r}, v106, {sr(OUT,4)}, s3 offen offset:{r*128}{(' sc1', ' nt', ' sc0 sc1')[OPT['outsc']-1] if OPT['outsc'] else ''}""")
    o(f"s_movk_i32 s4, 0x207\nv_mov_b32 v8, 0\nv_mov_b32 v9, 4")
    for r in range(4):
        o(f"""v_cmp_class_f32 vcc, v{eAg+r}, s4
        s_and_b64 exec, vcc, {sr(58 if r else 56,2)}
        ds_write_b32 v8, v9 offset:{L_FLAG}
        s_mov_b64 exec, -1""")
    o(f"""s_branch L_chk
    L_ewait:
    s_waitcnt lgkmcnt(0)
    s_barrier""")
    if OPT["stamp"]:
        o(f"s_memrealtime {sr(STAMP0 + 2 * (nst[0] - 1), 2)}")
    o(f"""v_mov_b32 v8, 0
    L_chk:
    s_waitcnt lgkmcnt(0)
    s_barrier
    ds_read_b32 v9, v8 offset:{L_FLAG}
    s_waitcnt lgkmcnt(0)
    v_readfirstlane_b32 s4, v9
    s_cmp_gt_u32 s4, s{sRedo}
    s_cbranch_scc1 L_slow""")
    if OPT["stamp"]:
        o(f"""s_waitcnt vmcnt(0)
        s_memrealtime s[4:5]
        s_lshl_b32 s3, s2, 4
        s_add_u32 s3, s3, s{sWave}
        s_lshl_b32 s3, s3, 6
        s_add_u32 s3, s3, {WS_STAMP}
        s_mov_b32 s{WS+2}, {WS_STAMP + (4 << 20)}
        v_mov_b32 v30, s3
        s_waitcnt lgkmcnt(0)""")
        for i in range(nst[0] + 1):
            sreg = STAMP0 + 2 * i if i < nst[0] else 4
            o(f"v_mov_b32 v31, s{sreg}\nbuffer_store_dword v31, v30, {sr(WS,4)}, 0 offen offset:{4*i}")
    o("L_end:\ns_endpgm")
    o(f"""L_slow:
    s_mov_b32 s{sRedo}, 4
    s_setprio 0
    s_waitcnt vmcnt(0) lgkmcnt(0)
    s_barrier
    v_lshrrev_b32 v10, 4, v0
    v_cmp_gt_u32 vcc, 50, v10
    v_mul_u32_u24 v10, {RS}, v10
    v_and_b32 v12, 15, v0
    v_lshl_add_u32 v10, v12, 5, v10
    v_mov_b32 v12, 0
    v_mov_b32 v13, 0
    v_mov_b32 v14, 0
    v_mov_b32 v15, 0
    v_bfe_u32 v6, v2, 4, 1
    v_lshrrev_b32 v9, 5, v2
    v_lshl_add_u32 v6, v6, 1, v9
    v_and_b32 v7, 15, v2
    v_lshl_add_u32 v6, v6, 4, v7
    v_lshlrev_b32 v6, 1, v6
    s_movk_i32 s5, {128*128}
    s_mov_b64 exec, vcc
    ds_write_b128 v10, v[12:15]
    ds_write_b128 v10, v[12:15] offset:16
    s_mov_b64 exec, -1""")
    for k in range(4):
        o(f"buffer_load_ushort v{16+k}, v6, {sr(WM,4)}, s5 offen offset:{k*128}")
    o(f"s_mov_b32 s4, {NLOG2E}\ns_waitcnt vmcnt(0) lgkmcnt(0)\ns_barrier")
    for k in range(4):
        o(f"v_lshlrev_b32 v{16+k}, 16, v{16+k}\nv_mul_f32 v{16+k}, s4, v{16+k}")
    o(f"""v_and_b32 v6, 31, v2
    v_lshl_add_u32 v6, v6, 1, v9
    v_lshlrev_b32 v6, 1, v6
    v_lshlrev_b32 v7, 1, v2
    v_lshlrev_b32 v8, 3, v2
    s_mov_b32 s56, s{sWave}
    s_movk_i32 s61, {RS//4}
    s_mov_b32 s62, {WS_AT}
    L_sseg:
    s_and_b32 s57, s2, 7
    s_lshl_b32 s57, s57, 8
    s_add_u32 s57, s57, s56
    s_lshl_b32 s57, s57, 8
    s_andn2_b32 s58, s2, 7
    s_add_u32 s57, s57, s58
    s_add_u32 s57, s57, {WS_TAB}
    buffer_load_dword v20, v12, {sr(WS,4)}, s57 offen sc1
    s_waitcnt vmcnt(0)
    v_readfirstlane_b32 s58, v20
    s_lshr_b32 s59, s58, 16
    s_and_b32 s58, s58, 0xffff
    s_mul_i32 s58, s58, 12
    s_mul_i32 s60, s56, {RECB}
    s_add_u32 s58, s58, s60
    s_add_u32 s58, s58, {WS_REC}
    s_cmp_eq_u32 s59, 0
    s_cbranch_scc1 L_snext
    L_sedge:
    buffer_load_dwordx3 v[20:22], v12, {sr(WS,4)}, s58 offen
    s_waitcnt vmcnt(0)
    v_and_b32 v23, 0xffff, v22
    v_lshl_add_u32 v23, v23, 5, v6
    buffer_load_ushort v23, v23, {sr(WS,4)}, s62 offen
    v_lshrrev_b32 v22, 16, v22
    v_mad_u32_u24 v24, v22, s61, v7
    ds_read_u16 v25, v24 offset:512
    v_mad_u32_u24 v24, v22, s61, v8
    v_lshlrev_b32 v27, 16, v20
    v_and_b32 v20, 0xffff0000, v20
    v_lshlrev_b32 v28, 16, v21
    v_and_b32 v21, 0xffff0000, v21
    v_mul_f32 v27, v27, v16
    v_fmac_f32 v27, v20, v17
    v_fmac_f32 v27, v28, v18
    v_fmac_f32 v27, v21, v19
    s_waitcnt vmcnt(0) lgkmcnt(0)
    v_lshlrev_b32 v23, 16, v23
    v_lshlrev_b32 v25, 16, v25
    v_sub_f32 v27, v27, v25
    v_add_f32 v27, v27, v23
    v_exp_f32 v28, v27
    s_add_u32 s58, s58, 12
    v_add_f32 v28, 1.0, v28
    v_rcp_f32 v28, v28
    s_sub_u32 s59, s59, 1
    v_mul_f32 v28, v27, v28
    v_cvt_f64_f32 v[28:29], v28
    ds_add_f64 v24, v[28:29]
    s_cmp_lg_u32 s59, 0
    s_cbranch_scc1 L_sedge
    L_snext:
    s_add_u32 s56, s56, 16
    s_cmp_lt_u32 s56, 256
    s_cbranch_scc1 L_sseg
    s_branch L_post""")
    o(f"""L_loader:
    v_add_u32 v{vCon}, {L_CON}, v31
    s_load_dword s{sTag}, {sr(WS,2)}, {WS_X}
    s_barrier
    s_cmp_lg_u32 s{sWave}, 15
    s_cbranch_scc1 L_ldw
    v_bfe_u32 v8, v2, 4, 2
    v_lshlrev_b32 v8, 4, v8
    v_xor_b32 v8, v8, v31
    v_xor_b32 v9, 64, v8""")
    for i in range(8):
        if i % 4 == 0:
            o(f"s_mov_b32 m0, {L_XT + 1024*i}\ns_add_u32 s4, s{sXo}, {1024*i}")
        o(f"buffer_load_dwordx4 v{8 + (i & 1)}, {sr(XS,4)}, s4 offen offset:{1024*(i%4)} lds")
    o(f"""s_branch L_lddone
    L_ldw:
    v_bfe_u32 v10, v2, 4, 1
    v_lshlrev_b32 v10, 5, v10
    v_xor_b32 v10, v10, v31
    v_xor_b32 v11, 64, v10
    s_sub_u32 s4, s{sWave}, 13
    s_lshl_b32 s4, s4, 13""")
    for i in range(9):
        if i % 4 == 0:
            o(f"s_add_u32 m0, s4, {L_W12 + 1024*i}\ns_add_u32 s5, s4, {1024*i}")
        o(f"buffer_load_dwordx4 v{10 + (i & 1)}, {sr(WM,4)}, s5 offen offset:{1024*(i%4)} lds")
    o("L_lddone:")
    restamp(1)
    o("s_barrier")
    restamp(2)
    o(jobrd)
    o(common)
    o(jobad)
    o(f"""    s_mul_i32 s{sTag}, s{sTag}, 0x9e3779b5
    s_add_u32 s{sTag}, s{sTag}, 0x7f4a7c15
    v_mov_b32 v28, s{sTag}
    ds_write_b32 v32, v28 offset:{L_TAG}
    s_waitcnt vmcnt(0)
    s_barrier""")
    restamp(3)
    o("s_branch L_join")
    return o


def main():
    k = gen()
    n = "standalone__mpnn_edge_mlp__graph_kernel"
    out = f"""; Fused MPNN edge MLP. Phase 1: every workgroup bins 3136 edges by destination bucket (49 nodes) and builds
; @launch grid=(256,1,1) block=(1024,1,1) lds={LDS}
.amdgcn_target "amdgcn-amd-amdhsa--gfx950"
.text
.globl {n}
.p2align 8
.type {n},@function
{n}:
{k.text()}.section .rodata,"a"
.p2align 6
.amdhsa_kernel {n}
  .amdhsa_next_free_vgpr 128
  .amdhsa_next_free_sgpr 102
  .amdhsa_accum_offset 128
  .amdhsa_group_segment_fixed_size 0
  .amdhsa_kernarg_size 72
  .amdhsa_user_sgpr_count 2
  .amdhsa_user_sgpr_kernarg_segment_ptr 1
  .amdhsa_system_sgpr_workgroup_id_x 1
.end_amdhsa_kernel
"""
    open(sys.argv[1], "w").write(out)


main()
```

```python
import struct
import sys

OPT = dict(stamp=0, safe=0, sleep=1, outsc=0, prio=1, bsc=0, eapos=0, b1=1, wsoff=0)
for a in sys.argv[2:]:
    k, v = a.split("=")
    assert k in OPT, k
    OPT[k] = int(v)

N, E = 12500, 800000
NB, NPB, CH = 256, 49, 3136
MAGIC, MSHIFT = 21400, 20
NROW = NB * NPB

WS_X = 0
WS_AT = 4096
WS_AF = 1024
WS_TAB = 8 << 20
WS_REC = 9 << 20
RECB = CH * 12
WS_END = WS_REC + NB * RECB
WS_STAMP = 32 << 20


def f32(x):
    return "0x%08x" % struct.unpack("<I", struct.pack("<f", x))[0]


NLOG2E = f32(-1.4426950408889634)
PLOG2E = f32(1.4426950408889634)
NLN2 = f32(-0.6931471805599453)


class Asm:
    def __init__(self):
        self.l = []

    def __call__(self, s):
        if isinstance(s, list):
            s = "\n".join(s)
        for x in s.strip("\n").split("\n"):
            x = x.strip()
            if x:
                self.l.append(x if x.endswith(":") else "    " + x)

    def text(self):
        return "\n".join(self.l) + "\n"


def vr(a, n):
    return f"v[{a}:{a+n-1}]"


def sr(a, n):
    return f"s[{a}:{a+n-1}]"


def dpp_scan(o, v):
    for m in ("row_shr:1 row_mask:0xf", "row_shr:2 row_mask:0xf", "row_shr:4 row_mask:0xf",
              "row_shr:8 row_mask:0xf", "row_bcast:15 row_mask:0xa", "row_bcast:31 row_mask:0xc"):
        o(f"s_nop 1\nv_add_u32_dpp v{v}, v{v}, v{v} {m} bank_mask:0xf")


def mfma32(d, a, b, c=None):
    cs = vr(d, 16) if c is None else c
    return f"v_mfma_f32_32x32x16_bf16 {vr(d,16)}, {vr(a,4)}, {vr(b,4)}, {cs}"


def mfma16(d, a, b, c=None):
    cs = vr(d, 4) if c is None else c
    return f"v_mfma_f32_16x16x32_bf16 {vr(d,4)}, {vr(a,4)}, {vr(b,4)}, {cs}"


RS = 656
L_NODE = 0
L_WU = 50 * RS
L_XT = L_WU + 16384
L_HIST2 = L_XT + 8192
L_EAZ = L_HIST2 + 256
L_FLAG = L_EAZ + 8
L_TAG = L_EAZ + 16
L_LOFF = 57856
LSTR, LD = 528, 26624
SLOTS, NGMAX = 320, 512
L_EA2 = L_LOFF + 2 * LD
L_DL = L_EA2 + 16 * SLOTS * 8
DD = 2816
L_DN = L_DL + DD
L_CON = L_DN + DD
LDS = L_CON + 6144
L_HIST1 = L_LOFF
L_OFFS = L_HIST1 + 1024
L_SORT = L_OFFS + 1024
L_EA1 = L_SORT + CH * 8
L_W12 = L_EA1 + 26 * 1024
assert L_FLAG + 8 <= L_LOFF and LDS <= 163840 and L_W12 + 17408 <= L_DL and 50 * LSTR <= LD

DST, SRC, EAS, WS, XS, WM, WU, OUT, AT, ATS = 16, 20, 24, 28, 32, 36, 40, 44, 48, 52
sWave, sB, sXo, sSelE, sSelO, sRun, sK, sTag, sRedo, sRec = 6, 7, 8, 9, 10, 11, 12, 13, 14, 15
M0_, M1_ = 56, 58
sMask = 56
sBad = 72
sM49, sO4, sScale, sJx, sJw, sJb, sJg, sJr = 60, 61, 62, 63, 64, 65, 66, 67
sT0, sT1 = 74, 75
STAMP0 = 76

X = [8, 24, 40]
Z, T, OF = 56, 72, 88
AX, BXE, BXO = 96, 100, 104
Nn, Da, Db, Dk, CK = 108, 110, 112, 114, 116
LA, FA, LG, SL, DR, pH, pG, pR = 118, 120, 122, 123, 124, 125, 126, 127
cT, cC, cJ = 4, 5, 6
R0, R1 = T + 12, T + 14
vCon = 3


def gen():
    o = Asm()
    nst = [0]

    def st():
        if OPT["stamp"]:
            o(f"s_memrealtime {sr(STAMP0 + 2 * nst[0], 2)}")
            nst[0] += 1
            assert STAMP0 + 2 * nst[0] <= 102

    def restamp(i):
        if OPT["stamp"]:
            o(f"s_memrealtime {sr(STAMP0 + 2 * i, 2)}")

    vP, vD, vS, vWU = 7, 8, 12, 20
    o("s_cmp_ge_u32 s2, 256\ns_cbranch_scc1 L_end")
    st()
    o(f"""s_load_dwordx2 {sr(DST,2)}, s[0:1], 24
    s_load_dwordx2 {sr(SRC,2)}, s[0:1], 16
    s_load_dwordx2 {sr(EAS,2)}, s[0:1], 8
    s_load_dwordx2 {sr(WM,2)}, s[0:1], 32
    s_load_dwordx2 {sr(XS,2)}, s[0:1], 0
    s_load_dwordx2 {sr(WU,2)}, s[0:1], 40
    s_load_dwordx2 {sr(WS,2)}, s[0:1], 64
    s_load_dwordx2 {sr(OUT,2)}, s[0:1], 48
    v_lshrrev_b32 v1, 6, v0
    v_and_b32 v2, 63, v0
    v_readfirstlane_b32 s{sWave}, v1
    v_lshl_add_u32 v{vP}, v1, 7, v2
    s_mul_i32 s4, s2, {CH//2}
    s_sub_u32 s4, {E//2}, s4
    s_min_u32 s4, s4, {CH//2}
    v_add_u32 v16, 64, v{vP}
    v_cmp_gt_u32 {sr(M0_,2)}, s4, v{vP}
    v_cmp_gt_u32 {sr(M1_,2)}, s4, v16
    v_lshlrev_b32 v16, 3, v{vP}
    v_lshlrev_b32 v30, 2, v0
    v_mov_b32 v32, 0
    ds_write_b32 v30, v32 offset:{L_HIST1}
    s_mul_i32 s{sO4}, s2, {CH*4}
    s_mov_b32 s{DST+2}, {E*4}
    s_mov_b32 s{DST+3}, 0x20000
    s_waitcnt lgkmcnt(0)
    s_mov_b64 exec, {sr(M0_,2)}
    buffer_load_dwordx2 {vr(vD,2)}, v16, {sr(DST,4)}, s{sO4} offen
    s_mov_b64 exec, {sr(M1_,2)}
    buffer_load_dwordx2 {vr(vD+2,2)}, v16, {sr(DST,4)}, s{sO4} offen offset:512
    s_mov_b64 exec, -1
    {f"s_add_u32 s{WS}, s{WS}, {OPT['wsoff'] << 20}" if OPT['wsoff'] else ""}
    {f"s_addc_u32 s{WS+1}, s{WS+1}, 0" if OPT['wsoff'] else ""}
    s_mov_b32 s{SRC+2}, {E*4}
    s_mov_b32 s{SRC+3}, 0x20000
    s_lshl_b32 s{sT0}, s{sO4}, 1
    s_add_u32 s{EAS+2}, s{sT0}, {CH*8}
    s_min_u32 s{EAS+2}, s{EAS+2}, {E*8}
    s_mov_b32 s{EAS+3}, 0x20000
    s_mov_b32 s{WM+2}, {132*128}
    s_mov_b32 s{WM+3}, 0x20000
    s_mov_b32 s{XS+3}, 0x20000
    s_mov_b32 s{WU+2}, {128*128}
    s_mov_b32 s{WU+3}, 0x20000
    s_mov_b32 s{WS+2}, {WS_END}
    s_mov_b32 s{WS+3}, 0x20000
    s_and_b32 s{sB}, s2, 7
    s_lshl_b32 s{sB}, s{sB}, 5
    s_lshr_b32 s4, s2, 3
    s_add_u32 s{sB}, s{sB}, s4
    s_mul_i32 s{sXo}, s{sB}, {NPB*128}
    s_add_u32 s{OUT+2}, s{sXo}, {NPB*128}
    s_min_u32 s{OUT+2}, s{OUT+2}, {N*128}
    s_mov_b32 s{XS+2}, s{OUT+2}
    s_mov_b32 s{OUT+3}, 0x20000
    v_lshlrev_b32 v31, 4, v2
    v_lshlrev_b32 v41, 4, v{vP}
    v_add_u32 v{vCon}, {L_CON}, v31
    s_cmp_ge_u32 s{sWave}, 13
    s_cbranch_scc1 L_loader
    {"s_barrier" if OPT["b1"] else ""}
    s_mov_b64 exec, {sr(M1_,2)}
    buffer_load_dwordx2 {vr(vS+2,2)}, v16, {sr(SRC,4)}, s{sO4} offen offset:512
    s_mov_b64 exec, {sr(M0_,2)}
    buffer_load_dwordx2 {vr(vS,2)}, v16, {sr(SRC,4)}, s{sO4} offen
    s_lshl_b32 s4, s{sWave}, 11
    s_add_u32 m0, s4, {L_EA1}
    s_movk_i32 s{sM49}, -{NPB}
    s_mov_b64 exec, -1
    v_mov_b32 v17, 1
    s_cmp_lg_u32 s{sWave}, 1
    {"" if OPT["b1"] else "s_barrier"}
    s_cbranch_scc1 L_nocon""")
    o(f"""    v_lshrrev_b32 v48, 5, v2
    v_bfe_u32 v49, v2, 2, 2
    v_and_b32 v50, 1, v2
    v_bfe_u32 v51, v2, 2, 1
    v_and_b32 v52, 3, v2
    v_lshlrev_b32 v52, 3, v52
    v_and_b32 v53, 15, v2
    v_lshrrev_b32 v54, 4, v2
    v_and_b32 v55, 1, v54
    v_lshl_add_u32 v56, v55, 5, v52
    v_and_b32 v57, 31, v2
    v_lshlrev_b32 v57, 3, v57
    v_bfe_u32 v58, v2, 1, 1
    v_bfe_u32 v59, v2, 3, 2
    v_lshl_add_u32 v58, v59, 1, v58
    v_lshlrev_b32 v58, 2, v58
    v_mul_u32_u24 v59, 12, v53
    ds_write_b128 v{vCon}, v[56:59]
    v_mov_b32 v60, 0xbf80
    v_lshlrev_b32 v61, 4, v50
    v_lshlrev_b32 v62, v61, v60
    v_lshl_add_u32 v63, v48, 1, v51
    v_cmp_eq_u32 vcc, 0, v63
    v_cmp_eq_u32 s[4:5], 1, v63
    s_mov_b32 s3, {L_DL}
    v_lshl_add_u32 v65, v48, 3, s3
    v_cndmask_b32 v60, 0, v62, vcc
    v_cndmask_b32 v61, 0, v62, s[4:5]
    ds_write_b64 v{vCon}, v[60:61] offset:1024
    v_lshl_add_u32 v66, v51, 1, v50
    v_lshl_add_u32 v66, v66, 2, s3
    v_lshl_add_u32 v67, v49, 2, s3
    ds_write_b128 v{vCon}, v[64:67] offset:2048
    v_bfe_u32 v68, v2, 1, 3
    v_xor_b32 v68, v68, v54
    v_lshlrev_b32 v68, 4, v68
    v_lshl_add_u32 v68, v53, 7, v68
    v_lshl_add_u32 v76, v54, 3, v49
    v_lshl_add_u32 v72, v76, 7, v52
    v_bfe_u32 v69, v2, 3, 2
    v_lshl_add_u32 v69, v69, 5, v72
    v_lshlrev_b32 v70, 9, v54
    v_lshl_add_u32 v70, v53, 2, v70
    v_mul_u32_u24 v71, {4*RS}, v54
    v_lshl_add_u32 v71, v53, 1, v71
    ds_write_b128 v{vCon}, v[68:71] offset:3072
    v_lshl_add_u32 v73, v48, 11, v72
    v_mul_u32_u24 v74, {RS}, v53
    v_lshl_add_u32 v74, v54, 6, v74
    ds_write_b128 v{vCon}, v[72:75] offset:4096
    v_mul_u32_u24 v76, {LSTR}, v2
    v_add_u32 v76, {L_LOFF}, v76
    v_mul_u32_u24 v77, {RS}, v2
    ds_write_b64 v{vCon}, v[76:77] offset:{5120+8}
    v_lshlrev_b32 v77, 2, v2
    ds_write_b32 v77, v76 offset:{L_HIST2}
    v_mov_b32 v33, 0
    v_mov_b32 v34, 0
    v_mov_b32 v35, 0
    ds_write_b128 v32, v[32:35] offset:{L_EAZ}
    s_mov_b64 exec, 0xff
    ds_write_b128 v31, v[32:35] offset:{49*RS+512}
    s_mov_b64 exec, -1""")
    o("L_nocon:")
    ea = f"""s_mov_b64 exec, {sr(M0_,2)}
    buffer_load_dwordx4 v41, {sr(EAS,4)}, s{sT0} offen lds
    s_mov_b64 exec, {sr(M1_,2)}
    buffer_load_dwordx4 v41, {sr(EAS,4)}, s{sT0} offen offset:1024 lds
    s_mov_b64 exec, -1
"""
    vA, vR, vPair, vOne = 32, 36, 40, 17
    common = f"""s_add_u32 s{AT}, s{WS}, {WS_AT}
    s_addc_u32 s{AT+1}, s{WS+1}, 0
    s_mov_b32 s{ATS}, s{AT}
    s_mov_b32 s{ATS+1}, s{AT+1}
    s_or_b32 s{AT+1}, s{AT+1}, 0x80000000
    s_mov_b32 s{AT+2}, {2*NROW*128}
    s_mov_b32 s{AT+3}, 0x00c00000
    s_mov_b32 s{ATS+3}, 0x20000
    s_mov_b32 s{sRedo}, 0
    s_bfe_u32 s4, s{sWave}, 0x20001
    s_and_b32 s5, s{sWave}, 1
    s_lshr_b32 s3, s{sWave}, 3
    s_lshl_b32 s{sJr}, s4, 4
    s_lshl_b32 s{sJx}, s4, 11
    s_lshl_b32 s{sJw}, s3, 13
    s_add_u32 s{sJw}, s{sJw}, {L_W12}
    s_mul_i32 s{sJb}, s4, {16*RS}
    s_lshl_b32 s5, s5, 5
    s_add_u32 s{sJb}, s{sJb}, s5
    s_lshl_b32 s{sT1}, s5, 1
    s_lshl_b32 s{sScale}, s3, 31
    s_xor_b32 s{sScale}, s{sScale}, {NLOG2E}
    s_mul_i32 s3, s3, {NROW*128}
    s_add_u32 s3, s3, s{sXo}
    s_add_u32 s{ATS+2}, s3, {NPB*128}
    s_add_u32 s{sJg}, s3, s{sJx}
    s_add_u32 s{sJg}, s{sJg}, s{sT1}"""
    o(common)
    o("s_waitcnt vmcnt(2)")
    vJ, jX, jW, jA = 88, 56, 64, 80
    jobrd = f"ds_read_b128 {vr(vJ,4)}, v{vCon} offset:3072"
    jobad = f"""s_waitcnt lgkmcnt(0)
    v_add_u32 v{vJ}, s{sJx}, v{vJ}
    v_xor_b32 v{vJ+1}, s{sT1}, v{vJ+1}
    v_xor_b32 v92, 64, v{vJ}
    v_add_u32 v{vJ+1}, s{sJw}, v{vJ+1}
    v_xor_b32 v93, 32, v{vJ+1}"""
    st()
    for i in range(4):
        o(f"""v_mul_u32_u24 v{vA+i}, {MAGIC}, v{vD+i}
        v_lshrrev_b32 v{20+i}, {MSHIFT}, v{vA+i}
        v_lshlrev_b32 v{vA+i}, 2, v{20+i}""")
        if i == 1:
            o(f"""s_mov_b64 exec, {sr(M0_,2)}
            ds_add_rtn_u32 v{vR}, v{vA}, v{vOne} offset:{L_HIST1}
            ds_add_rtn_u32 v{vR+1}, v{vA+1}, v{vOne} offset:{L_HIST1}
            s_mov_b64 exec, {sr(M1_,2)}""")
    o(f"""ds_add_rtn_u32 v{vR+2}, v{vA+2}, v{vOne} offset:{L_HIST1}
    ds_add_rtn_u32 v{vR+3}, v{vA+3}, v{vOne} offset:{L_HIST1}
    {ea if OPT["eapos"] == 0 else "s_mov_b64 exec, -1"}
    s_cmp_lg_u32 s{sWave}, 0
    s_waitcnt lgkmcnt(0)
    s_barrier""")
    st()
    vC, vO = 48, 52
    o(f"""s_cbranch_scc1 L_noscan
    ds_read_b128 {vr(vC,4)}, v31 offset:{L_HIST1}
    s_waitcnt lgkmcnt(0)
    v_add_u32 v{vO+2}, v{vC}, v{vC+1}
    v_add_u32 v{vO+3}, v{vO+2}, v{vC+2}
    v_add_u32 v18, v{vO+3}, v{vC+3}
    v_mov_b32 v19, v18""")
    dpp_scan(o, 19)
    o(f"""v_sub_u32 v{vO}, v19, v18
    v_add_u32 v{vO+1}, v{vO}, v{vC}
    v_add_u32 v{vO+2}, v{vO}, v{vO+2}
    v_add_u32 v{vO+3}, v{vO}, v{vO+3}
    ds_write_b128 v31, {vr(vO,4)} offset:{L_OFFS}
    s_waitcnt lgkmcnt(0)
    s_barrier
    L_noscan:""")
    if OPT["eapos"] == 1:
        o(ea)
    o(jobrd)
    for i in (3, 2, 1, 0):
        o(f"v_add_u32 v{vPair+2*i+1}, {L_EA1 + 8*(i&1) + 1024*(i>>1)}, v{vPair+1}")
    o("s_waitcnt vmcnt(2)")
    for i in range(4):
        o(f"""v_mad_i32_i24 v{vD+i}, v{20+i}, s{sM49}, v{vD+i}
        v_lshlrev_b32 v{vS+i}, 2, v{vS+i}
        v_lshl_or_b32 v{vPair+2*i}, v{vD+i}, 18, v{vS+i}""")
    o(jobad)
    o("s_cbranch_scc0 L_scanned\ns_barrier\nL_scanned:")
    st()
    for i in range(4):
        o(f"ds_read_b32 v{vA+i}, v{vA+i} offset:{L_OFFS}")
    for i in range(4):
        o(f"s_waitcnt lgkmcnt({3-i})\nv_add_lshl_u32 v{vA+i}, v{vA+i}, v{vR+i}, 3")
    for i in range(4):
        if i % 2 == 0:
            o(f"s_mov_b64 exec, {sr((M0_, M1_)[i//2],2)}")
        o(f"ds_write_b64 v{vA+i}, {vr(vPair+2*i,2)} offset:{L_SORT}")
    o("s_mov_b64 exec, -1")
    vTs, vTc, RO = 94, 95, DST
    o(f"""L_join:
    s_add_u32 s{sK}, s{sWave}, s2
    s_and_b32 s{sK}, s{sK}, 15
    s_lshl_b32 s4, s{sK}, 6
    v_and_b32 v16, 60, v30
    v_add_u32 v16, s4, v16
    v_mov_b32 v17, 0
    ds_read2st64_b32 {vr(vTs,2)}, v16 offset0:{L_OFFS//256} offset1:{L_HIST1//256}
    ds_read_b128 {vr(jX,4)}, v{vJ} offset:{L_XT}
    ds_read_b128 {vr(jX+4,4)}, v92 offset:{L_XT}""")
    for t in range(2):
        for s in range(2):
            for u in range(2):
                o(f"ds_read_b64_tr_b16 {vr(jW + 8*t + 4*s + 2*u, 2)}, v{(vJ+1, 93)[t]} offset:{s*4096 + u*512}")
    o("s_waitcnt lgkmcnt(4)")
    o([mfma16(jA, jX, jW, "0"), mfma16(jA, jX + 4, jW + 4), "s_waitcnt lgkmcnt(0)",
       mfma16(jA + 4, jX, jW + 8, "0"), mfma16(jA + 4, jX + 4, jW + 12)])
    o(f"""s_mov_b32 s3, 0x07060100
    v_readlane_b32 s4, v{vTs}, 0
    v_readlane_b32 s5, v{vTs}, 15
    v_readlane_b32 s{sRun}, v{vTc}, 15
    s_mul_i32 s{sRec}, s2, {RECB}
    s_add_u32 s{sRec}, s{sRec}, {WS_REC}
    v_add_u32 v19, s4, v2
    v_lshl_or_b32 v{vTs}, v{vTc}, 16, v{vTs}
    s_add_u32 s5, s5, s{sRun}
    s_sub_u32 s{sRun}, s5, s4
    s_mul_i32 s5, s5, 12
    s_mov_b32 s{RO}, s{WS}
    s_mov_b32 s{RO+1}, s{WS+1}
    s_add_u32 s{RO+2}, s5, s{sRec}
    s_min_u32 s{RO+2}, s{RO+2}, {WS_END}
    v_lshlrev_b32 v18, 3, v19
    v_mul_u32_u24 v19, 12, v19
    s_cmp_lt_u32 s{sWave}, 8""")
    for q in range(8):
        o(f"v_mul_f32 v{jA+q}, s{sScale}, v{jA+q}")
    for r in range(4):
        o(f"""v_cvt_pk_bf16_f32 v{jX+r}, v{jA+r}, v{jA+4+r}
        v_perm_b32 v{jX+4+r}, v{jA+4+r}, v{jX+r}, s3""")
    o("s_cbranch_scc0 L_bt")
    for r in range(4):
        o(f"buffer_store_dword v{jX+4+r}, v{vJ+2}, {sr(ATS,4)}, s{sJg} offen offset:{r*128} sc1")
    o(f"""s_branch L_jobdone
    L_bt:""")
    for r in range(4):
        o(f"buffer_store_dword v{jX+4+r}, v{vJ+2}, {sr(ATS,4)}, s{sJg} offen offset:{r*128}{' sc1' if OPT['bsc'] else ''}")
    o(f"""v_add_u32 v{vJ+3}, s{sJb}, v{vJ+3}
    s_cmp_lt_u32 s{sWave}, 14
    s_cselect_b64 exec, -1, 0xffff""")
    for r in range(4):
        o(f"""ds_write_b16 v{vJ+3}, v{jX+r} offset:{512 + r*RS}
        ds_write_b16_d16_hi v{vJ+3}, v{jX+r} offset:{576 + r*RS}""")
        if r == 0:
            o("s_cbranch_scc0 L_btdone")
    o(f"""L_btdone:
    s_mov_b64 exec, -1
    s_cmp_lg_u32 s{sWave}, 15
    s_cbranch_scc1 L_jobdone
    v_and_b32 v8, 0x1ff, v{vJ+1}
    v_xor_b32 v8, 64, v8
    v_add_u32 v8, {L_W12 + 128*128}, v8
    v_xor_b32 v9, 32, v8
    ds_read_b64_tr_b16 v[24:25], v8
    ds_read_b64_tr_b16 v[26:27], v9
    L_jobdone:""")
    o(f"""s_waitcnt vmcnt(4) lgkmcnt(0)
    s_barrier""")
    st()
    vOut = 32
    vWb, vTa = 89, 90
    o(f"""ds_read_b32 v{vTc}, v17 offset:{L_TAG}
    L_out:
    s_sub_u32 s4, s{sRun}, 192
    v_cmp_gt_i32 vcc, s4, v2""")
    for k in range(3):
        o(f"ds_read_b64 {vr(vOut+4*k+2,2)}, v18 offset:{L_SORT + 512*k}")
    o(f"""s_or_b32 vcc_lo, vcc_lo, 1
    s_mov_b64 exec, vcc
    ds_read_b64 {vr(vOut+14,2)}, v18 offset:{L_SORT + 1536}
    s_mov_b64 exec, -1""")
    for k in range(4):
        if k == 3:
            o("s_mov_b64 exec, vcc")
        o(f"s_waitcnt lgkmcnt(3)\nds_read_b64 {vr(vOut+4*k,2)}, v{vOut+4*k+3}")
    o("s_mov_b64 exec, -1")
    for k in range(4):
        if k == 3:
            o("s_mov_b64 exec, vcc")
        o(f"""s_waitcnt lgkmcnt({3-k})
        buffer_store_dwordx3 {vr(vOut+4*k,3)}, v19, {sr(RO,4)}, s{sRec} offen offset:{768*k} sc1""")
    o(f"""s_mov_b64 exec, -1
    s_sub_u32 s{sRun}, s{sRun}, 256
    s_cmp_gt_i32 s{sRun}, 0
    s_cbranch_scc0 L_outdone
    v_add_u32 v18, 0x800, v18
    v_add_u32 v19, 0xc00, v19
    s_branch L_out
    L_outdone:""")
    st()
    o(f"""ds_read_b128 {vr(cT,4)}, v{vCon}
    v_readfirstlane_b32 s{sTag}, v{vTc}
    s_lshr_b32 s4, s{sK}, 1
    s_lshl_b32 s4, s4, 8
    s_add_u32 s4, s4, s2
    s_lshl_b32 s4, s4, 1
    s_and_b32 s5, s{sK}, 1
    s_add_u32 s4, s4, s5
    s_lshl_b32 s4, s4, 7
    s_add_u32 s4, s4, {WS_TAB}
    v_lshlrev_b32 v16, 3, v2
    s_lshr_b32 s5, s{sB}, 4
    s_sub_u32 s5, s5, s{sWave}
    s_and_b32 s5, s5, 15
    v_lshrrev_b32 v17, 2, v2
    v_lshl_add_u32 v17, v17, 4, s5
    s_mov_b32 s5, {RECB}
    v_mul_lo_u32 v{vWb}, v17, s5
    v_lshlrev_b32 v{vTa}, 8, v17
    v_and_b32 v91, 15, v2
    v_lshlrev_b32 v18, 4, v0
    s_and_b32 s{sT0}, s2, 7
    s_lshl_b32 s{sT0}, s{sT0}, 16
    s_andn2_b32 s3, s2, 7
    s_add_u32 s{sT0}, s{sT0}, s3
    s_add_u32 s{sT0}, s{sT0}, {WS_TAB}
    s_mov_b32 s{sT1}, 0xf000f000
    s_mov_b32 s5, {WS_REC}
    s_mov_b64 exec, 0xffff
    s_waitcnt vmcnt(0)
    buffer_store_dwordx2 {vr(vTs,2)}, v16, {sr(WS,4)}, s4 offen sc1
    s_mov_b64 exec, -1
    buffer_load_dwordx4 {vr(vWU,4)}, v18, {sr(WU,4)}, 0 offen""")
    st()
    o(f"""s_cmp_lg_u32 s{sWave}, 14
    s_waitcnt lgkmcnt(0)
    s_barrier
    s_cbranch_scc1 L_noaf
    s_lshl_b32 s4, s2, 3
    v_mov_b32 v8, 0
    v_mov_b32 v10, s{sTag}
    v_not_b32 v11, v10
    s_mov_b64 exec, 1
    buffer_store_dwordx2 v[10:11], v8, {sr(WS,4)}, s4 offen offset:{WS_AF} sc1
    s_mov_b64 exec, -1
    L_noaf:""")
    o(f"""s_cmp_ge_u32 s{sWave}, 13
    s_cbranch_scc1 L_nofill
    v_lshrrev_b32 v28, 4, v0
    v_cmp_gt_u32 vcc, 50, v28
    v_mul_u32_u24 v28, {RS}, v28
    v_lshl_add_u32 v28, v91, 5, v28
    v_mov_b32 v32, 0
    v_mov_b32 v33, 0
    v_mov_b32 v34, 0
    v_mov_b32 v35, 0
    s_mov_b64 exec, vcc
    ds_write_b128 v28, v[32:35]
    ds_write_b128 v28, v[32:35] offset:16
    v_cmp_gt_u32 vcc, {DD//4}, v0
    v_mov_b32 v38, {L_LOFF + 49*LSTR}
    v_mov_b32 v39, {49*RS}
    v_add_u32 v37, {L_DL}, v30
    s_mov_b64 exec, vcc
    ds_write2st64_b32 v37, v38, v39 offset0:0 offset1:{DD//256}
    s_mov_b64 exec, -1
    s_branch L_filled
    L_nofill:
    s_cmp_lg_u32 s{sWave}, 15
    s_cbranch_scc1 L_filled
    s_mov_b32 s4, {NLOG2E}
    v_cmp_lt_u32 vcc, 31, v2""")
    for i in range(4):
        o(f"""v_lshlrev_b32 v8, 16, v{24+i}
        v_and_b32 v9, 0xffff0000, v{24+i}
        v_mul_f32 v8, s4, v8
        v_mul_f32 v9, s4, v9
        v_cvt_pk_bf16_f32 v10, v8, v9
        v_lshlrev_b32 v11, 16, v10
        v_and_b32 v12, 0xffff0000, v10
        v_sub_f32 v11, v8, v11
        v_sub_f32 v12, v9, v12
        v_cvt_pk_bf16_f32 v11, v11, v12
        v_cndmask_b32 v{24+i}, v10, v11, vcc""")
    o(f"""ds_write_b64 v{vCon}, v[24:25] offset:{1024+8}
    ds_write_b64 v{vCon}, v[26:27] offset:5120
    v_lshlrev_b32 v8, 2, v2
    v_add_u32 v8, {L_LOFF + 49*LSTR}, v8
    v_mov_b32 v9, {(NROW-1)*4}
    v_mov_b32 v10, {L_EAZ}
    ds_write2st64_b32 v8, v9, v10 offset0:0 offset1:{LD//256}
    L_filled:
    s_mov_b32 s3, 0x100000""")
    vTab = 92
    o("L_poll:")
    o(f"""buffer_load_dwordx2 {vr(vTab,2)}, v{vTa}, {sr(WS,4)}, s{sT0} offen sc1
    s_waitcnt vmcnt(0)
    v_xor_b32 v24, s{sTag}, v{vTab+1}
    v_and_or_b32 v24, v{vTab}, s{sT1}, v24
    v_cmp_ne_u32 vcc, 0, v24
    s_and_b64 exec, exec, vcc
    s_cbranch_scc0 L_polled""")
    if OPT["sleep"]:
        o(f"s_sleep {OPT['sleep']}")
    o(f"""s_sub_u32 s3, s3, 1
    s_cbranch_scc0 L_poll
    s_endpgm
    L_polled:
    s_mov_b64 exec, -1""")
    st()
    vRec, vGa, vRem = 24, 8, 12
    o(f"""v_and_b32 v{vTab+1}, 0xffff, v{vTab}
    v_lshrrev_b32 v{vTab}, 16, v{vTab}
    v_mad_u32_u24 v{vTab+1}, v{vTab+1}, 12, v{vWb}
    v_cmp_lt_u32 {sr(sBad,2)}, 32, v{vTab}""")
    for it in range(4):
        o(f"v_sub_u32_dpp v{vRem+it}, v{vTab}, v91 row_newbcast:{4*it} row_mask:0xf bank_mask:0xf")
    for it in range(4):
        o(f"""v_add_u32_dpp v{vGa+it}, v{vTab+1}, v7 row_newbcast:{4*it} row_mask:0xf bank_mask:0xf
        v_cmp_lt_i32 {sr(sMask+8+2*it,2)}, 16, v{vRem+it}
        v_cmp_lt_i32 {sr(sMask+2*it,2)}, 0, v{vRem+it}""")
    for it in range(4):
        o(f"""s_mov_b64 exec, {sr(sMask+8+2*it,2)}
        s_cbranch_execz L_nl{it}
        buffer_load_dwordx3 {vr(vRec+16+4*it,3)}, v{vGa+it}, {sr(WS,4)}, s5 offen offset:192
        L_nl{it}:""")
    for it in range(4):
        o(f"""s_mov_b64 exec, {sr(sMask+2*it,2)}
        buffer_load_dwordx3 {vr(vRec+4*it,3)}, v{vGa+it}, {sr(WS,4)}, s5 offen""")
    vIni, vNa = BXO + 2, BXO + 3
    o(f"""s_mov_b64 exec, -1
    v_lshlrev_b32 v91, 3, v91
    s_lshl_b32 s{sK}, s{sWave}, 7
    buffer_load_dwordx2 {vr(vTab,2)}, v91, {sr(WS,4)}, s{sK} offen offset:{WS_AF} sc1
    ds_read_b128 {vr(DR,4)}, v{vCon} offset:2048
    ds_read_b64 {vr(BXO+2,2)}, v{vCon} offset:{5120+8}
    s_mul_i32 s{sRun}, s{sWave}, {SLOTS*8}
    s_add_u32 s{sRun}, s{sRun}, {L_EA2}
    v_lshl_add_u32 v{vRec+3}, v2, 3, s{sRun}""")
    for it in range(1, 4):
        o(f"v_add_u32 v{vRec+4*it+3}, {512*it}, v{vRec+3}")
    o(f"s_lshr_b32 s{sRun}, s{sRun}, 3\ns_add_u32 s{sRun}, s{sRun}, 256\ns_add_u32 s5, s{sRun}, {SLOTS-256}")
    for it in range(4):
        m, w = sMask + 8 + 2 * it, vRec + 16 + 4 * it
        o(f"""s_bcnt1_i32_b64 s4, {sr(m,2)}
        s_cbranch_scc0 L_ns{it}
        v_mbcnt_lo_u32_b32 v{w+3}, s{m}, 0
        v_mbcnt_hi_u32_b32 v{w+3}, s{m+1}, v{w+3}
        v_add_lshl_u32 v{w+3}, v{w+3}, s{sRun}, 3
        s_add_u32 s{sRun}, s{sRun}, s4
        L_ns{it}:""")
    o(f"""s_mov_b32 s{sSelE}, 0x05040100
    s_mov_b32 s{sSelO}, 0x07060302
    v_lshrrev_b32 v16, 3, v0
    v_lshlrev_b32 v16, 7, v16
    v_and_b32 v17, 7, v0
    v_lshl_add_u32 v16, v17, 3, v16
    v_perm_b32 v8, v{vWU+1}, v{vWU}, s{sSelE}
    v_perm_b32 v9, v{vWU+3}, v{vWU+2}, s{sSelE}
    v_perm_b32 v10, v{vWU+1}, v{vWU}, s{sSelO}
    v_perm_b32 v11, v{vWU+3}, v{vWU+2}, s{sSelO}
    ds_write_b64 v16, v[8:9] offset:{L_WU}
    ds_write_b64 v16, v[10:11] offset:{L_WU+64}
    s_cmp_gt_u32 s{sRun}, s5
    s_cselect_b32 s4, 1, 0
    s_or_b32 s4, s4, s{sBad}
    s_or_b32 s4, s4, s{sBad+1}
    v_mov_b32 v19, 0
    v_mov_b32 v20, 4
    s_cbranch_scc0 L_ok1
    ds_write_b32 v19, v20 offset:{L_FLAG}
    s_mov_b64 {sr(sMask+8,2)}, 0
    s_mov_b64 {sr(sMask+10,2)}, 0
    s_mov_b64 {sr(sMask+12,2)}, 0
    s_mov_b64 {sr(sMask+14,2)}, 0
    L_ok1:
    v_lshlrev_b32 v18, 2, v2
    v_mov_b32 v{CK}, 0
    v_mov_b32 v{CK+1}, 0""")
    o(f"""s_lshl_b32 s4, s{sWave}, 4
    s_lshl_b32 s5, s{sWave}, 5
    s_add_u32 s{sT0}, s{sWave}, {L_DL//4}
    s_waitcnt lgkmcnt(0)
    v_add_u32 v{pH}, s4, v{pH}
    v_add_u32 v{pG}, s4, v{pG}
    v_add_u32 v{pR}, s4, v{pR}
    v_add_u32 v22, s5, v{vIni}
    v_subrev_u32 v{vIni}, 28, v{vIni}
    s_mul_i32 s4, s{sB}, {NPB}
    s_add_u32 s4, s4, {NROW}
    v_add_lshl_u32 v16, v2, s4, 2
    v_mov_b32 v17, {L_EAZ}
    s_lshl_b32 s{sT1}, s{sWave}, 2
    s_sub_u32 s{sRun}, 28, s{sT1}""")
    vRank = 8
    for r in range(8):
        w = vRec + 4 * r
        o(f"s_mov_b64 exec, {sr(sMask+2*r,2)}")
        o(f"s_waitcnt vmcnt({4-r})" if r < 4 else f"s_cbranch_execz L_np{r}")
        o(f"""v_lshrrev_b32 v21, 16, v{w+2}
        ds_add_rtn_u32 v{vRank+r}, v21, v20 offset:{L_HIST2}
        ds_write_b64 v{w+3}, {vr(w,2)}
        v_and_b32 v{w+2}, 0xffff, v{w+2}""")
        if r >= 4:
            o(f"L_np{r}:")
    o("s_waitcnt lgkmcnt(0)")
    for r in range(8):
        w = vRec + 4 * r
        o(f"s_mov_b64 exec, {sr(sMask+2*r,2)}")
        if r >= 4:
            o(f"s_cbranch_execz L_nq{r}")
        o(f"ds_write2st64_b32 v{vRank+r}, v{w+2}, v{w+3} offset0:0 offset1:{LD//256}")
        if r >= 4:
            o(f"L_nq{r}:")
    o(f"""s_mov_b64 exec, -1
    L_afchk:
    s_waitcnt vmcnt(0)
    v_not_b32 v{vTab+1}, v{vTab+1}
    v_cmp_ne_u32 vcc, s{sTag}, v{vTab}
    v_cmp_ne_u32 {sr(sBad,2)}, s{sTag}, v{vTab+1}
    s_or_b64 vcc, vcc, {sr(sBad,2)}
    s_cbranch_scc0 L_afok
    buffer_load_dwordx2 {vr(vTab,2)}, v91, {sr(WS,4)}, s{sK} offen offset:{WS_AF} sc1
    s_sub_u32 s3, s3, 1
    s_cbranch_scc0 L_afchk
    s_endpgm
    L_afok:
    s_waitcnt lgkmcnt(0)
    s_barrier""")
    st()
    o(f"""ds_read_b32 v11, v18 offset:{L_HIST2}
    ds_read_b32 v9, v19 offset:{L_FLAG}
    ds_read_b128 {vr(AX+2,4)}, v{vCon} offset:1024
    ds_read_b64 {vr(BXO,2)}, v{vCon} offset:5120
    s_waitcnt lgkmcnt(3)
    v_sub_u32 v12, v11, v{vIni}
    v_lshrrev_b32 v8, 5, v12
    v_mov_b32 v10, v8
    v_and_b32 v12, 31, v12
    v_add_u32 v11, s{sT1}, v11
    v_cmp_gt_i32 {sr(sMask,2)}, s{sRun}, v12""")
    dpp_scan(o, 10)
    o(f"""v_cmp_lt_u32 vcc, s{sWave}, v8
    v_cmp_lt_u32 {sr(sBad,2)}, 16, v8
    v_sub_u32 v8, v10, v8
    v_readlane_b32 s{sK}, v10, 63
    v_add_lshl_u32 v8, v8, s{sT0}, 2
    s_waitcnt lgkmcnt(0)
    v_readfirstlane_b32 s4, v9
    s_or_b32 s5, s{sBad}, s{sBad+1}
    s_or_b32 s4, s4, s5
    s_cbranch_scc1 L_slow
    s_cmp_gt_u32 s{sK}, {NGMAX}
    s_cbranch_scc1 L_slow
    s_mov_b64 exec, vcc
    ds_write2st64_b32 v8, v22, v{vNa} offset0:0 offset1:{DD//256}
    s_mov_b64 exec, {sr(sMask,2)}
    ds_write2st64_b32 v11, v16, v17 offset0:0 offset1:{LD//256}
    s_mov_b64 exec, -1
    s_add_u32 s{sK}, s{sK}, 63
    s_lshr_b32 s{sK}, s{sK}, 2
    s_sub_u32 s{sK}, s{sK}, s{sWave}
    s_lshr_b32 s{sK}, s{sK}, 4
    s_waitcnt lgkmcnt(0)
    s_barrier""")
    st()
    o(f"s_cmp_eq_u32 s{sK}, 0\ns_cbranch_scc1 L_post")

    def PF(d, a, b, c):
        return f"v_pk_fma_f32 {vr(d,2)}, {vr(a,2)}, {vr(b,2)}, {vr(c,2)}"

    def chain(Y, dfin, rr, filler):
        r = [f"v_pk_add_f32 {vr(Da,2)}, {vr(T,2)}, 1.0 op_sel_hi:[1,0]"]
        cur = Da
        for i in range(1, 8):
            nxt = dfin if i == 7 else (Db if cur == Da else Da)
            src = Y if i == 1 else Nn
            r += [PF(Nn, src, T + 2 * i, src), PF(nxt, cur, T + 2 * i, cur), PF(Nn, Y + 2 * i, cur, Nn)]
            cur = nxt
        r += [f"v_rcp_f32 v{rr}, v{dfin}", f"v_rcp_f32 v{rr+1}, v{dfin+1}", filler,
              f"v_pk_mul_f32 {vr(rr,2)}, {vr(Nn,2)}, {vr(rr,2)}",
              f"v_cvt_f64_f32 {vr(R0,2)}, v{rr}", f"v_cvt_f64_f32 {vr(R1,2)}, v{rr+1}"]
        return r

    def exps(Y):
        return [f"v_exp_f32 v{T+i}, v{Y+i}" for i in range(16)]

    def flush(off):
        return [f"ds_add_f64 v{FA}, {vr(R0,2)} offset:{off}", f"ds_add_f64 v{FA+1}, {vr(R1,2)} offset:{off}"]

    def loads(x, par, of=OF):
        r = [f"v_and_b32 v{of+j}, 0x1fffc, v{of+j}" for j in range(8)] if OPT["safe"] else []
        return r + [f"buffer_load_dword v{x+2*j+par}, v{of+j}, {sr(AT,4)}, 0 offen" for j in range(8)]

    def ofr(la, of=OF):
        return [f"ds_read_b128 {vr(of,4)}, v{la}", f"ds_read_b128 {vr(of+4,4)}, v{la} offset:16"]

    def small():
        return [f"ds_read_b64 {vr(AX,2)}, v{SL}", f"ds_read_b64_tr_b16 {vr(BXE+2,2)}, v{DR} offset:512",
                f"ds_read_b64_tr_b16 {vr(BXO+2,2)}, v{DR} offset:576"]

    def shifts(x):
        return [f"v_lshlrev_b64 {vr(Z+2*i,2)}, 16, {vr(x+2*i,2)}" for i in range(8)]

    if OPT["prio"]:
        o("s_setprio 1")
    o(f"""ds_read_b64 {vr(Nn,2)}, v{pH}
    ds_read_b32 v{LG}, v{pG}
    ds_read_b64 {vr(Da,2)}, v{pH} offset:256
    ds_read_b32 v{DR}, v{pR} offset:{DD}
    ds_read_b32 v{Db}, v{pG} offset:256
    ds_read_b64 {vr(LA,2)}, v{pH} offset:512
    ds_read_b64 {vr(FA,2)}, v{pH} offset:{DD}
    s_waitcnt lgkmcnt(5)
    v_add_u32 v{LG}, v{LG}, v{cJ}""")
    o(ofr(Nn, T) + ofr(Nn + 1, T + 8) + [f"ds_read_b32 v{SL}, v{LG} offset:{LD}", "s_waitcnt lgkmcnt(7)"])
    o(ofr(Da, Z) + ofr(Da + 1, Z + 8))
    o(f"v_add_u32 v{DR}, v{DR}, v{cT}\nv_add_u32 v{LG}, v{Db}, v{cJ}\ns_waitcnt lgkmcnt(4)")
    o(loads(X[0], 0, T) + loads(X[0], 1, T + 8) + small())
    o(f"s_waitcnt lgkmcnt(3)\ns_cmp_lt_u32 s{sK}, 2\ns_cbranch_scc1 L_pro1")
    o(loads(X[1], 0, Z) + loads(X[1], 1, Z + 8))
    o(f"s_waitcnt vmcnt(16)\ns_branch L_pro2\nL_pro1:\ns_waitcnt vmcnt(0)\nL_pro2:")
    o(ofr(LA) + [f"ds_read_b32 v{SL}, v{LG} offset:{LD}", f"ds_read_b32 v{DR}, v{pR} offset:{DD+256}"])
    o(shifts(X[0]) + [f"v_mov_b32 v{R0+i}, 0" for i in range(4)] + ["s_waitcnt lgkmcnt(4)"])
    o([mfma32(Z, AX, BXE), mfma32(X[0], AX, BXO), f"v_add_u32 v{FA}, v{FA}, v{cC}", f"v_add_u32 v{FA+1}, v{FA+1}, v{cC}", "s_nop 9"])
    st()
    o(".p2align 6\nL_loop:")
    for u in range(3):
        xc, xn, xf = X[u], X[(u + 1) % 3], X[(u + 2) % 3]
        eZ, eX = exps(Z), exps(xc)
        o(eZ[:6])
        o(["s_waitcnt lgkmcnt(0)", f"v_add_u32 v{DR}, v{DR}, v{cT}"] + flush(256))
        o(f"ds_read_b64 {vr(FA,2)}, v{pH} offset:{DD + 256*u}")
        o(small())
        o(f"s_cmp_lt_u32 s{sK}, 3\ns_cbranch_scc1 L_a{u}")
        o(loads(xf, 0))
        o(f"L_a{u}:")
        o(ofr(LA + 1) + [f"ds_read_b64 {vr(LA,2)}, v{pH} offset:{256*(u+3)}", f"ds_read_b32 v{LG}, v{pG} offset:{256*(u+2)}"])
        o(eZ[6:])
        c = chain(Z, Dk, Db, "s_waitcnt vmcnt(8) lgkmcnt(0)")
        o(c)
        o(f"s_cbranch_scc0 L_b{u}\ns_waitcnt vmcnt(0)\nL_b{u}:")
        o(shifts(xn) + [mfma32(xn, AX, BXO)] + eX[:3] + [mfma32(Z, AX, BXE)] + eX[3:6])
        o([f"v_add_u32 v{FA}, v{FA}, v{cC}", f"v_add_u32 v{FA+1}, v{FA+1}, v{cC}", f"v_add_u32 v{LG}, v{LG}, v{cJ}"] + eX[6:8])
        o(flush(0))
        o(f"s_cbranch_scc1 L_c{u}")
        o(loads(xf, 1))
        if OPT["prio"]:
            o(f"s_branch L_d{u}\nL_c{u}:\ns_setprio 0\nL_d{u}:")
        else:
            o(f"L_c{u}:")
        o(ofr(LA) + [f"ds_read_b32 v{SL}, v{LG} offset:{LD}", f"ds_read_b32 v{DR}, v{pR} offset:{DD + 256*(u+2)}"])
        o(f"s_sub_u32 s{sK}, s{sK}, 1\ns_cmp_lg_u32 s{sK}, 0")
        o(eX[8:])
        if u == 2:
            o([f"v_add_u32 v{p}, 0x300, v{p}" for p in (pH, pG, pR)])
        o(chain(xc, Db, Da, PF(CK, Dk, Db, CK)))
        o("s_cbranch_scc0 L_done" if u < 2 else "s_cbranch_scc1 L_loop")
    o("L_done:")
    o(flush(256))
    o(f"""s_mov_b32 s4, {f32(2.0**120)}
    v_add_f32 v{CK}, v{CK}, v{CK+1}
    v_cmp_ngt_f32 vcc, s4, v{CK}
    s_waitcnt lgkmcnt(0)
    v_mov_b32 v{OF}, 0
    v_mov_b32 v{OF+1}, 4
    s_mov_b64 exec, vcc
    ds_write_b32 v{OF}, v{OF+1} offset:{L_FLAG}
    s_mov_b64 exec, -1""")
    eX_, eW, eA, eAcc, eAg, eG = 8, 16, 48, 56, 64, 72
    o("L_post:")
    st()
    o(f"""s_or_b32 s4, s2, s{sWave}
    s_cbranch_scc1 L_nox
    v_mov_b32 v8, 0
    v_mov_b32 v9, s{sTag}
    s_mov_b64 exec, 1
    buffer_store_dword v9, v8, {sr(WS,4)}, 0 offen sc1
    s_mov_b64 exec, -1
    L_nox:
    s_cmp_ge_u32 s{sWave}, 8
    s_cbranch_scc1 L_ewait
    ds_read_b128 v[104:107], v{vCon} offset:3072
    ds_read_b128 v[108:111], v{vCon} offset:4096
    s_lshr_b32 s4, s{sWave}, 1
    s_and_b32 s5, s{sWave}, 1
    s_lshl_b32 s5, s5, 5
    s_lshl_b32 s{sT0}, s4, 11
    s_mul_i32 s{sT1}, s4, {16*RS}
    s_lshl_b32 s3, s5, 1
    s_add_u32 s3, s3, s{sXo}
    s_add_u32 s3, s3, s{sT0}
    s_waitcnt lgkmcnt(0)
    v_add_u32 v104, s{sT0}, v104
    v_add_u32 v108, s5, v108
    v_add_u32 v109, s5, v109
    v_xor_b32 v105, 64, v104
    ds_read_b128 {vr(eX_,4)}, v104 offset:{L_XT}
    ds_read_b128 {vr(eX_+4,4)}, v105 offset:{L_XT}""")
    for t in range(2):
        for s in range(2):
            for u in range(2):
                o(f"ds_read_b64_tr_b16 {vr(eW + 16*t + 4*s + 2*u, 2)}, v108 offset:{L_WU + s*4096 + u*512 + t*64}")
    o(f"""v_add_u32 v111, s{sT1}, v110
    s_cmp_lt_u32 s{sWave}, 6
    s_cselect_b64 {sr(56,2)}, -1, 0xffff
    s_cselect_b64 {sr(58,2)}, -1, 0
    s_waitcnt lgkmcnt(0)""")
    for t in range(2):
        for s in range(2):
            for u in range(2):
                o(f"ds_read_b64_tr_b16 {vr(eW + 16*t + 8 + 4*s + 2*u, 2)}, v109 offset:{L_WU + (64+16*s)*128 + u*512 + t*64}")
    for t in range(2):
        for s in range(2):
            o(mfma16(eAcc + 4 * t, eX_ + 4 * s, eW + 16 * t + 4 * s, "0" if s == 0 else None))
    o("s_waitcnt lgkmcnt(0)\ns_barrier")
    st()
    for s in range(2):
        for u in range(4):
            o(f"ds_read_b128 {vr(eG + 16*s + 4*u, 4)}, v111 offset:{s*256 + u*16}")
    for s in range(2):
        for u in range(4):
            g = eG + 16 * s + 4 * u
            o(f"""s_waitcnt lgkmcnt({7 - 4*s - u})
            v_cvt_f32_f64 v{g}, {vr(g,2)}
            v_cvt_f32_f64 v{g+2}, {vr(g+2,2)}
            v_cvt_pk_bf16_f32 v{eA+4*s+u}, v{g}, v{g+2}""")
    o(f"s_mov_b32 s4, {NLN2}\ns_mov_b32 s5, {NLOG2E}")
    for s in range(2):
        for t in range(2):
            o(mfma16(eAg + 4 * t, eA + 4 * s, eW + 16 * t + 8 + 4 * s, "0" if s == 0 else None))
    o("s_nop 7")
    for i in range(8):
        o(f"v_fmac_f32 v{eAcc+i}, s4, v{eAg+i}")
    for i in range(8):
        o(f"v_mul_f32 v{eG+i}, s5, v{eAcc+i}")
    for i in range(8):
        o(f"v_exp_f32 v{eG+i}, v{eG+i}")
    for i in range(8):
        o(f"v_add_f32 v{eG+i}, 1.0, v{eG+i}")
    for i in range(8):
        o(f"v_rcp_f32 v{eG+i}, v{eG+i}")
    for i in range(8):
        o(f"v_mul_f32 v{eG+i}, v{eAcc+i}, v{eG+i}")
    for r in range(4):
        o(f"""v_cvt_pk_bf16_f32 v{eA+r}, v{eG+r}, v{eG+4+r}
        buffer_store_dword v{eA+r}, v106, {sr(OUT,4)}, s3 offen offset:{r*128}{(' sc1', ' nt', ' sc0 sc1')[OPT['outsc']-1] if OPT['outsc'] else ''}""")
    o(f"s_movk_i32 s4, 0x207\nv_mov_b32 v8, 0\nv_mov_b32 v9, 4")
    for r in range(4):
        o(f"""v_cmp_class_f32 vcc, v{eAg+r}, s4
        s_and_b64 exec, vcc, {sr(58 if r else 56,2)}
        ds_write_b32 v8, v9 offset:{L_FLAG}
        s_mov_b64 exec, -1""")
    o(f"""s_branch L_chk
    L_ewait:
    s_waitcnt lgkmcnt(0)
    s_barrier""")
    if OPT["stamp"]:
        o(f"s_memrealtime {sr(STAMP0 + 2 * (nst[0] - 1), 2)}")
    o(f"""v_mov_b32 v8, 0
    L_chk:
    s_waitcnt lgkmcnt(0)
    s_barrier
    ds_read_b32 v9, v8 offset:{L_FLAG}
    s_waitcnt lgkmcnt(0)
    v_readfirstlane_b32 s4, v9
    s_cmp_gt_u32 s4, s{sRedo}
    s_cbranch_scc1 L_slow""")
    if OPT["stamp"]:
        o(f"""s_waitcnt vmcnt(0)
        s_memrealtime s[4:5]
        s_lshl_b32 s3, s2, 4
        s_add_u32 s3, s3, s{sWave}
        s_lshl_b32 s3, s3, 6
        s_add_u32 s3, s3, {WS_STAMP}
        s_sub_u32 s{WS}, s{WS}, {OPT['wsoff'] << 20}
        s_subb_u32 s{WS+1}, s{WS+1}, 0
        s_mov_b32 s{WS+2}, {WS_STAMP + (4 << 20)}
        v_mov_b32 v30, s3
        s_waitcnt lgkmcnt(0)""")
        for i in range(nst[0] + 1):
            sreg = STAMP0 + 2 * i if i < nst[0] else 4
            o(f"v_mov_b32 v31, s{sreg}\nbuffer_store_dword v31, v30, {sr(WS,4)}, 0 offen offset:{4*i}")
    o("L_end:\ns_endpgm")
    o(f"""L_slow:
    s_mov_b32 s{sRedo}, 4
    s_setprio 0
    s_waitcnt vmcnt(0) lgkmcnt(0)
    s_barrier
    v_lshrrev_b32 v10, 4, v0
    v_cmp_gt_u32 vcc, 50, v10
    v_mul_u32_u24 v10, {RS}, v10
    v_and_b32 v12, 15, v0
    v_lshl_add_u32 v10, v12, 5, v10
    v_mov_b32 v12, 0
    v_mov_b32 v13, 0
    v_mov_b32 v14, 0
    v_mov_b32 v15, 0
    v_bfe_u32 v6, v2, 4, 1
    v_lshrrev_b32 v9, 5, v2
    v_lshl_add_u32 v6, v6, 1, v9
    v_and_b32 v7, 15, v2
    v_lshl_add_u32 v6, v6, 4, v7
    v_lshlrev_b32 v6, 1, v6
    s_movk_i32 s5, {128*128}
    s_mov_b64 exec, vcc
    ds_write_b128 v10, v[12:15]
    ds_write_b128 v10, v[12:15] offset:16
    s_mov_b64 exec, -1""")
    for k in range(4):
        o(f"buffer_load_ushort v{16+k}, v6, {sr(WM,4)}, s5 offen offset:{k*128}")
    o(f"s_mov_b32 s4, {NLOG2E}\ns_waitcnt vmcnt(0) lgkmcnt(0)\ns_barrier")
    for k in range(4):
        o(f"v_lshlrev_b32 v{16+k}, 16, v{16+k}\nv_mul_f32 v{16+k}, s4, v{16+k}")
    o(f"""v_and_b32 v6, 31, v2
    v_lshl_add_u32 v6, v6, 1, v9
    v_lshlrev_b32 v6, 1, v6
    v_lshlrev_b32 v7, 1, v2
    v_lshlrev_b32 v8, 3, v2
    s_mov_b32 s56, s{sWave}
    s_movk_i32 s61, {RS//4}
    s_mov_b32 s62, {WS_AT}
    L_sseg:
    s_and_b32 s57, s2, 7
    s_lshl_b32 s57, s57, 8
    s_add_u32 s57, s57, s56
    s_lshl_b32 s57, s57, 8
    s_andn2_b32 s58, s2, 7
    s_add_u32 s57, s57, s58
    s_add_u32 s57, s57, {WS_TAB}
    buffer_load_dword v20, v12, {sr(WS,4)}, s57 offen sc1
    s_waitcnt vmcnt(0)
    v_readfirstlane_b32 s58, v20
    s_lshr_b32 s59, s58, 16
    s_and_b32 s58, s58, 0xffff
    s_mul_i32 s58, s58, 12
    s_mul_i32 s60, s56, {RECB}
    s_add_u32 s58, s58, s60
    s_add_u32 s58, s58, {WS_REC}
    s_cmp_eq_u32 s59, 0
    s_cbranch_scc1 L_snext
    L_sedge:
    buffer_load_dwordx3 v[20:22], v12, {sr(WS,4)}, s58 offen
    s_waitcnt vmcnt(0)
    v_and_b32 v23, 0xffff, v22
    v_lshl_add_u32 v23, v23, 5, v6
    buffer_load_ushort v23, v23, {sr(WS,4)}, s62 offen
    v_lshrrev_b32 v22, 16, v22
    v_mad_u32_u24 v24, v22, s61, v7
    ds_read_u16 v25, v24 offset:512
    v_mad_u32_u24 v24, v22, s61, v8
    v_lshlrev_b32 v27, 16, v20
    v_and_b32 v20, 0xffff0000, v20
    v_lshlrev_b32 v28, 16, v21
    v_and_b32 v21, 0xffff0000, v21
    v_mul_f32 v27, v27, v16
    v_fmac_f32 v27, v20, v17
    v_fmac_f32 v27, v28, v18
    v_fmac_f32 v27, v21, v19
    s_waitcnt vmcnt(0) lgkmcnt(0)
    v_lshlrev_b32 v23, 16, v23
    v_lshlrev_b32 v25, 16, v25
    v_sub_f32 v27, v27, v25
    v_add_f32 v27, v27, v23
    v_exp_f32 v28, v27
    s_add_u32 s58, s58, 12
    v_add_f32 v28, 1.0, v28
    v_rcp_f32 v28, v28
    s_sub_u32 s59, s59, 1
    v_mul_f32 v28, v27, v28
    v_cvt_f64_f32 v[28:29], v28
    ds_add_f64 v24, v[28:29]
    s_cmp_lg_u32 s59, 0
    s_cbranch_scc1 L_sedge
    L_snext:
    s_add_u32 s56, s56, 16
    s_cmp_lt_u32 s56, 256
    s_cbranch_scc1 L_sseg
    s_branch L_post""")
    o(f"""L_loader:
    s_load_dword s{sTag}, {sr(WS,2)}, {WS_X}
    s_barrier
    s_cmp_lg_u32 s{sWave}, 15
    s_cbranch_scc1 L_ldw
    v_bfe_u32 v8, v2, 4, 2
    v_lshlrev_b32 v8, 4, v8
    v_xor_b32 v8, v8, v31
    v_xor_b32 v9, 64, v8""")
    for i in range(8):
        if i % 4 == 0:
            o(f"s_mov_b32 m0, {L_XT + 1024*i}\ns_add_u32 s4, s{sXo}, {1024*i}")
        o(f"buffer_load_dwordx4 v{8 + (i & 1)}, {sr(XS,4)}, s4 offen offset:{1024*(i%4)} lds")
    o(f"""s_branch L_lddone
    L_ldw:
    v_bfe_u32 v10, v2, 4, 1
    v_lshlrev_b32 v10, 5, v10
    v_xor_b32 v10, v10, v31
    v_xor_b32 v11, 64, v10
    s_sub_u32 s4, s{sWave}, 13
    s_lshl_b32 s4, s4, 13""")
    for i in range(9):
        if i % 4 == 0:
            o(f"s_add_u32 m0, s4, {L_W12 + 1024*i}\ns_add_u32 s5, s4, {1024*i}")
        o(f"buffer_load_dwordx4 v{10 + (i & 1)}, {sr(WM,4)}, s5 offen offset:{1024*(i%4)} lds")
    o("L_lddone:")
    restamp(1)
    o("s_barrier")
    restamp(2)
    o(jobrd)
    o(common)
    o(jobad)
    o(f"""    s_mul_i32 s{sTag}, s{sTag}, 0x9e3779b5
    s_add_u32 s{sTag}, s{sTag}, 0x7f4a7c15
    v_mov_b32 v28, s{sTag}
    ds_write_b32 v32, v28 offset:{L_TAG}
    s_waitcnt vmcnt(0)
    s_barrier""")
    restamp(3)
    o("s_branch L_join")
    return o


def main():
    k = gen()
    n = "standalone__mpnn_edge_mlp__graph_kernel"
    out = f"""; Fused MPNN edge MLP. Phase 1: every workgroup bins 3136 edges by destination bucket (49 nodes) and builds
; @launch grid=(256,1,1) block=(1024,1,1) lds={LDS}
.amdgcn_target "amdgcn-amd-amdhsa--gfx950"
.text
.globl {n}
.p2align 8
.type {n},@function
{n}:
{k.text()}.section .rodata,"a"
.p2align 6
.amdhsa_kernel {n}
  .amdhsa_next_free_vgpr 128
  .amdhsa_next_free_sgpr 102
  .amdhsa_accum_offset 128
  .amdhsa_group_segment_fixed_size 0
  .amdhsa_kernarg_size 72
  .amdhsa_user_sgpr_count 2
  .amdhsa_user_sgpr_kernarg_segment_ptr 1
  .amdhsa_system_sgpr_workgroup_id_x 1
.end_amdhsa_kernel
"""
    open(sys.argv[1], "w").write(out)


main()
```

```python
import struct
import sys

OPT = dict(stamp=0, safe=0, b1=1, pfn=10, za=9, zb=11, lo=3, sleep=1, outsc=0, prio=1, bsc=0, eapos=1)
for a in sys.argv[2:]:
    k, v = a.split("=")
    assert k in OPT, k
    OPT[k] = int(v)

N, E = 12500, 800000
NB, NPB, CH = 256, 49, 3136
MAGIC, MSHIFT = 21400, 20
NROW = NB * NPB

WS_X = 0
WS_AT = 4096
WS_TAB = 8 << 20
WS_REC = 9 << 20
RECB = CH * 12
WS_END = WS_REC + NB * RECB
WS_STAMP = 32 << 20


def f32(x):
    return "0x%08x" % struct.unpack("<I", struct.pack("<f", x))[0]


NLOG2E = f32(-1.4426950408889634)
PLOG2E = f32(1.4426950408889634)
NLN2 = f32(-0.6931471805599453)


class Asm:
    def __init__(self):
        self.l = []

    def __call__(self, s):
        if isinstance(s, list):
            s = "\n".join(s)
        for x in s.strip("\n").split("\n"):
            x = x.strip()
            if x:
                self.l.append(x if x.endswith(":") else "    " + x)

    def text(self):
        return "\n".join(self.l) + "\n"


def vr(a, n):
    return f"v[{a}:{a+n-1}]"


def sr(a, n):
    return f"s[{a}:{a+n-1}]"


def dpp_scan(o, v):
    for m in ("row_shr:1 row_mask:0xf", "row_shr:2 row_mask:0xf", "row_shr:4 row_mask:0xf",
              "row_shr:8 row_mask:0xf", "row_bcast:15 row_mask:0xa", "row_bcast:31 row_mask:0xc"):
        o(f"s_nop 1\nv_add_u32_dpp v{v}, v{v}, v{v} {m} bank_mask:0xf")


def mfma32(d, a, b, c=None):
    cs = vr(d, 16) if c is None else c
    return f"v_mfma_f32_32x32x16_bf16 {vr(d,16)}, {vr(a,4)}, {vr(b,4)}, {cs}"


def mfma16(d, a, b, c=None):
    cs = vr(d, 4) if c is None else c
    return f"v_mfma_f32_16x16x32_bf16 {vr(d,4)}, {vr(a,4)}, {vr(b,4)}, {cs}"


RS = 672
L_NODE = 0
L_WU = 50 * RS
L_XT = L_WU + 16384
L_HIST2 = L_XT + 8192
L_EAZ = L_HIST2 + 256
L_FLAG = L_EAZ + 8
L_TAG = L_EAZ + 16
L_TOT = L_EAZ + 20
L_W3T = L_EAZ + 32
L_LOFF = 59392
LSTR, LD = 528, 26624
SLOTS = 320
L_EA2 = L_LOFF + 2 * LD
L_DL = L_EA2 + 16 * SLOTS * 8
DD = 2560
L_DN = L_DL + DD
L_CON = L_DN + DD
LDS = L_CON + 5120
L_HIST1 = L_LOFF
L_OFFS = L_HIST1 + 1024
L_SORT = L_OFFS + 1024
L_EA1 = L_SORT + CH * 8
L_W12 = L_EA1 + 26 * 1024
assert L_W3T + 768 <= L_LOFF and LDS <= 163840 and L_W12 + 17408 <= L_DL and 50 * LSTR <= LD
assert L_W12 % 128 == 0 and L_EAZ % 16 == 0 and L_DL % 16 == 0 and (98 + 15 + 33) * 16 <= DD

DST, SRC, EAS, WS, XS, WM, WU, OUT, AT, ATS = 16, 20, 24, 28, 32, 36, 40, 44, 48, 52
sWave, sB, sXo, sSelE, sSelO, sRun, sK, sTag, sRedo, sRec = 6, 7, 8, 9, 10, 11, 12, 13, 14, 15
M0_, M1_ = 56, 58
sMask = 56
sBad = 72
sM49, sO4, sScale, sJx, sJw, sJb, sJg, sJr = 60, 61, 62, 63, 64, 65, 66, 67
sT0, sT1 = 74, 75
STAMP0 = 76

XA, ZA = [8, 24], [40, 56]
T, OF = 72, 88
AX, BE, BO = 96, 98, 100
NX, NZ, DX, DZ, Ta, Tb = 102, 104, 106, 108, 110, 112
LA, FA, CK, LG, SL, DR = 114, 116, 118, 119, 120, 121
vH, pH, pG, pR = 124, 125, 126, 127
cT, cC, cJ = 4, 5, 6
R0, R1 = T + 12, T + 14
vCon = 3


def gen():
    o = Asm()
    nst = [0]

    def st():
        if OPT["stamp"]:
            o(f"s_memrealtime {sr(STAMP0 + 2 * nst[0], 2)}")
            nst[0] += 1
            assert STAMP0 + 2 * nst[0] <= 102

    def restamp(i):
        if OPT["stamp"]:
            o(f"s_memrealtime {sr(STAMP0 + 2 * i, 2)}")

    vP, vD, vS, vWU = 7, 8, 12, 20
    o("s_cmp_ge_u32 s2, 256\ns_cbranch_scc1 L_end")
    st()
    o(f"""s_load_dwordx4 {sr(12,4)}, s[0:1], 16
    s_mul_i32 s{sO4}, s2, {CH*4}
    v_and_b32 v2, 63, v0
    v_lshlrev_b32 v{vP}, 1, v0
    s_add_u32 s{DST+2}, s{sO4}, {CH*4}
    v_sub_u32 v{vP}, v{vP}, v2
    s_min_u32 s{DST+2}, s{DST+2}, {E*4}
    v_lshlrev_b32 v16, 3, v{vP}
    s_mov_b32 s{DST+3}, 0x20000
    s_waitcnt lgkmcnt(0)
    s_mov_b64 {sr(DST,2)}, s[14:15]
    buffer_load_dwordx2 {vr(vD,2)}, v16, {sr(DST,4)}, s{sO4} offen
    buffer_load_dwordx2 {vr(vD+2,2)}, v16, {sr(DST,4)}, s{sO4} offen offset:512
    s_mov_b64 {sr(SRC,2)}, s[12:13]
    s_mov_b64 {sr(SRC+2,2)}, {sr(DST+2,2)}""")
    src = f"""buffer_load_dwordx2 {vr(vS,2)}, v16, {sr(SRC,4)}, s{sO4} offen
    buffer_load_dwordx2 {vr(vS+2,2)}, v16, {sr(SRC,4)}, s{sO4} offen offset:512"""
    if not OPT["b1"]:
        o(src)
    o(f"""s_load_dwordx2 {sr(EAS,2)}, s[0:1], 8
    s_load_dwordx2 {sr(WM,2)}, s[0:1], 32
    s_load_dwordx2 {sr(XS,2)}, s[0:1], 0
    s_load_dwordx2 {sr(WU,2)}, s[0:1], 40
    s_load_dwordx2 {sr(WS,2)}, s[0:1], 64
    s_load_dwordx2 {sr(OUT,2)}, s[0:1], 48
    v_lshrrev_b32 v1, 6, v0
    v_lshlrev_b32 v30, 2, v0
    v_mov_b32 v32, 0
    v_readfirstlane_b32 s{sWave}, v1
    ds_write_b32 v30, v32 offset:{L_HIST1}
    s_sub_u32 s4, s{DST+2}, s{sO4}
    v_add_u32 v17, 0x200, v16
    v_cmp_gt_u32 {sr(M0_,2)}, s4, v16
    v_cmp_gt_u32 {sr(M1_,2)}, s4, v17
    s_lshl_b32 s{sT0}, s{sO4}, 1
    s_lshl_b32 s{EAS+2}, s{DST+2}, 1
    s_mov_b32 s{EAS+3}, 0x20000
    s_mov_b32 s{WM+2}, {132*128}
    s_mov_b32 s{WM+3}, 0x20000
    s_mov_b32 s{XS+3}, 0x20000
    s_mov_b32 s{WU+2}, {128*128}
    s_mov_b32 s{WU+3}, 0x20000
    s_mov_b32 s{WS+2}, {WS_END}
    s_mov_b32 s{WS+3}, 0x20000
    s_and_b32 s{sB}, s2, 7
    s_lshl_b32 s{sB}, s{sB}, 5
    s_lshr_b32 s4, s2, 3
    s_add_u32 s{sB}, s{sB}, s4
    s_mul_i32 s{sXo}, s{sB}, {NPB*128}
    s_add_u32 s{OUT+2}, s{sXo}, {NPB*128}
    s_min_u32 s{OUT+2}, s{OUT+2}, {N*128}
    s_mov_b32 s{XS+2}, s{OUT+2}
    s_mov_b32 s{OUT+3}, 0x20000
    v_lshlrev_b32 v31, 4, v2
    v_lshlrev_b32 v41, 4, v{vP}
    v_add_u32 v{vCon}, {L_CON}, v31
    s_cmp_ge_u32 s{sWave}, 13
    s_waitcnt lgkmcnt(0)
    s_cbranch_scc1 L_loader
    s_barrier
    {src if OPT["b1"] else ""}
    s_lshl_b32 s4, s{sWave}, 11
    s_add_u32 m0, s4, {L_EA1}
    s_movk_i32 s{sM49}, -{NPB}
    v_mov_b32 v17, 1
    s_cmp_lg_u32 s{sWave}, 1
    s_cbranch_scc1 L_nocon""")
    o(f"""v_lshrrev_b32 v64, 5, v2
    v_bfe_u32 v49, v2, 2, 2
    v_and_b32 v50, 1, v2
    v_bfe_u32 v51, v2, 2, 1
    v_and_b32 v52, 3, v2
    v_lshlrev_b32 v52, 3, v52
    v_and_b32 v53, 15, v2
    v_lshrrev_b32 v54, 4, v2
    v_bfe_u32 v68, v2, 1, 3
    v_xor_b32 v68, v68, v54
    v_lshlrev_b32 v68, 4, v68
    v_lshl_add_u32 v68, v53, 7, v68
    v_lshl_add_u32 v76, v54, 3, v49
    v_lshl_add_u32 v72, v76, 7, v52
    v_bfe_u32 v77, v2, 3, 2
    v_lshl_add_u32 v69, v77, 5, v72
    v_lshlrev_b32 v70, 9, v54
    v_lshl_add_u32 v70, v53, 2, v70
    v_mul_u32_u24 v71, {4*RS}, v54
    v_lshl_add_u32 v71, v53, 1, v71
    ds_write_b128 v{vCon}, v[68:71] offset:3072
    v_cmp_gt_u32 vcc, 32, v2
    v_mul_u32_u24 v56, 192, v49
    v_add_u32 v56, {L_W3T - 512}, v56
    v_and_b32 v55, 1, v54
    v_cndmask_b32 v56, 0, v56, vcc
    v_lshl_add_u32 v55, v55, 5, v52
    v_add_u32 v56, v56, v55
    v_and_b32 v57, 31, v2
    v_lshlrev_b32 v57, 3, v57
    v_bfe_u32 v58, v2, 1, 1
    v_lshl_add_u32 v58, v77, 1, v58
    v_lshlrev_b32 v58, 2, v58
    v_mul_u32_u24 v59, 12, v53
    ds_write_b128 v{vCon}, v[56:59]
    v_cmp_eq_u32 vcc, 0, v51
    v_mov_b32 v60, 0xbf80
    v_lshlrev_b32 v61, 4, v50
    v_lshlrev_b32 v61, v61, v60
    v_cndmask_b32 v60, 0, v61, vcc
    v_xor_b32 v61, v60, v61
    v_mul_u32_u24 v62, {LSTR}, v2
    v_add_u32 v62, {L_LOFF}, v62
    v_mul_u32_u24 v63, {RS}, v2
    ds_write_b128 v{vCon}, v[60:63] offset:1024
    s_mov_b32 s3, {L_DL}
    v_lshl_add_u32 v65, v64, 3, s3
    v_lshl_add_u32 v66, v51, 1, v50
    v_lshl_add_u32 v66, v66, 2, s3
    v_lshl_add_u32 v67, v49, 2, s3
    ds_write_b128 v{vCon}, v[64:67] offset:2048
    v_bfe_u32 v73, v2, 3, 1
    v_lshl_add_u32 v73, v73, 2, v54
    v_lshl_add_u32 v73, v73, 1, v51
    v_lshl_add_u32 v73, v73, 7, v52
    v_mul_u32_u24 v74, {RS}, v53
    v_lshl_add_u32 v74, v54, 4, v74
    ds_write_b128 v{vCon}, v[72:75] offset:4096
    v_lshlrev_b32 v77, 2, v2
    ds_write_b32 v77, v62 offset:{L_HIST2}
    v_mov_b32 v33, 0
    v_mov_b32 v34, 0
    v_mov_b32 v35, 0
    ds_write_b128 v32, v[32:35] offset:{L_EAZ}
    s_mov_b64 exec, 0xff
    ds_write_b128 v31, v[32:35] offset:{49*RS+512}
    s_mov_b64 exec, -1""")
    o("L_nocon:")
    ea = f"""s_mov_b64 exec, -1
    buffer_load_dwordx4 v41, {sr(EAS,4)}, s{sT0} offen lds
    buffer_load_dwordx4 v41, {sr(EAS,4)}, s{sT0} offen offset:1024 lds
"""
    vA, vR, vPair, vOne = 32, 36, 40, 17
    common = f"""s_add_u32 s{AT}, s{WS}, {WS_AT}
    s_addc_u32 s{AT+1}, s{WS+1}, 0
    s_mov_b32 s{ATS}, s{AT}
    s_mov_b32 s{ATS+1}, s{AT+1}
    s_or_b32 s{AT+1}, s{AT+1}, 0x80000000
    s_mov_b32 s{AT+2}, {2*NROW*128}
    s_mov_b32 s{AT+3}, 0x00c00000
    s_mov_b32 s{ATS+3}, 0x20000
    s_mov_b32 s{sRedo}, 0
    s_bfe_u32 s4, s{sWave}, 0x20001
    s_and_b32 s5, s{sWave}, 1
    s_lshr_b32 s3, s{sWave}, 3
    s_xor_b32 s3, s3, 1
    s_lshl_b32 s{sJx}, s4, 11
    s_lshl_b32 s{sJw}, s3, 13
    s_add_u32 s{sJw}, s{sJw}, {L_W12}
    s_mul_i32 s{sJb}, s4, {16*RS}
    s_lshl_b32 s5, s5, 5
    s_add_u32 s{sJb}, s{sJb}, s5
    s_lshl_b32 s{sT1}, s5, 1
    s_lshl_b32 s{sScale}, s3, 31
    s_xor_b32 s{sScale}, s{sScale}, {NLOG2E}
    s_mul_i32 s3, s3, {NROW*128}
    s_add_u32 s3, s3, s{sXo}
    s_add_u32 s{ATS+2}, s3, {NPB*128}
    s_add_u32 s{sJg}, s3, s{sJx}
    s_add_u32 s{sJg}, s{sJg}, s{sT1}"""
    o(common)
    o("s_waitcnt vmcnt(2)")
    vJ, jX, jW, jA = 88, 56, 64, 80
    jobrd = f"ds_read_b128 {vr(vJ,4)}, v{vCon} offset:3072"
    jobad = f"""s_waitcnt lgkmcnt(0)
    v_add_u32 v{vJ}, s{sJx}, v{vJ}
    v_xor_b32 v{vJ+1}, s{sT1}, v{vJ+1}
    v_xor_b32 v92, 64, v{vJ}
    v_add_u32 v{vJ+1}, s{sJw}, v{vJ+1}
    v_xor_b32 v93, 32, v{vJ+1}"""
    st()
    for i in range(4):
        o(f"""v_mul_u32_u24 v{vA+i}, {MAGIC}, v{vD+i}
        v_lshrrev_b32 v{20+i}, {MSHIFT}, v{vA+i}
        v_lshlrev_b32 v{vA+i}, 2, v{20+i}""")
        if i == 1:
            o(f"""s_mov_b64 exec, {sr(M0_,2)}
            ds_add_rtn_u32 v{vR}, v{vA}, v{vOne} offset:{L_HIST1}
            ds_add_rtn_u32 v{vR+1}, v{vA+1}, v{vOne} offset:{L_HIST1}
            s_mov_b64 exec, {sr(M1_,2)}""")
    o(f"""ds_add_rtn_u32 v{vR+2}, v{vA+2}, v{vOne} offset:{L_HIST1}
    ds_add_rtn_u32 v{vR+3}, v{vA+3}, v{vOne} offset:{L_HIST1}
    {ea if OPT["eapos"] == 0 else "s_mov_b64 exec, -1"}
    s_cmp_lg_u32 s{sWave}, 0
    s_waitcnt lgkmcnt(0)
    s_barrier""")
    st()
    vC, vO = 48, 52
    o(f"""s_cbranch_scc1 L_noscan
    ds_read_b128 {vr(vC,4)}, v31 offset:{L_HIST1}
    s_waitcnt lgkmcnt(0)
    v_add_u32 v{vO+2}, v{vC}, v{vC+1}
    v_add_u32 v{vO+3}, v{vO+2}, v{vC+2}
    v_add_u32 v18, v{vO+3}, v{vC+3}
    v_mov_b32 v19, v18""")
    dpp_scan(o, 19)
    o(f"""v_sub_u32 v{vO}, v19, v18
    v_add_u32 v{vO+1}, v{vO}, v{vC}
    v_add_u32 v{vO+2}, v{vO}, v{vO+2}
    v_add_u32 v{vO+3}, v{vO}, v{vO+3}
    ds_write_b128 v31, {vr(vO,4)} offset:{L_OFFS}
    s_waitcnt lgkmcnt(0)
    s_barrier
    L_noscan:""")
    if OPT["eapos"] == 1:
        o(ea)
    o(jobrd)
    for i in (3, 2, 1, 0):
        o(f"v_add_u32 v{vPair+2*i+1}, {L_EA1 + 8*(i&1) + 1024*(i>>1)}, v{vPair+1}")
    o("s_waitcnt vmcnt(2)")
    for i in range(4):
        o(f"""v_mad_i32_i24 v{vD+i}, v{20+i}, s{sM49}, v{vD+i}
        v_lshlrev_b32 v{vS+i}, 2, v{vS+i}
        v_lshl_or_b32 v{vPair+2*i}, v{vD+i}, 18, v{vS+i}""")
    o(jobad)
    o("s_cbranch_scc0 L_scanned\ns_barrier\nL_scanned:")
    st()
    for i in range(4):
        o(f"ds_read_b32 v{vA+i}, v{vA+i} offset:{L_OFFS}")
    for i in range(4):
        o(f"s_waitcnt lgkmcnt({3-i})\nv_add_lshl_u32 v{vA+i}, v{vA+i}, v{vR+i}, 3")
    for i in range(4):
        if i % 2 == 0:
            o(f"s_mov_b64 exec, {sr((M0_, M1_)[i//2],2)}")
        o(f"ds_write_b64 v{vA+i}, {vr(vPair+2*i,2)} offset:{L_SORT}")
    o("s_mov_b64 exec, -1")
    def job():
        o(f"""ds_read_b128 {vr(jX,4)}, v{vJ} offset:{L_XT}
        ds_read_b128 {vr(jX+4,4)}, v92 offset:{L_XT}""")
        for t in range(2):
            for s in range(2):
                for u in range(2):
                    o(f"ds_read_b64_tr_b16 {vr(jW + 8*t + 4*s + 2*u, 2)}, v{(vJ+1, 93)[t]} offset:{s*4096 + u*512}")
        o("s_waitcnt lgkmcnt(4)")
        o([mfma16(jA, jX, jW, "0"), mfma16(jA, jX + 4, jW + 4), "s_waitcnt lgkmcnt(0)",
           mfma16(jA + 4, jX, jW + 8, "0"), mfma16(jA + 4, jX + 4, jW + 12)])
        o("s_mov_b32 s3, 0x07060100\ns_nop 6")
        for q in range(8):
            o(f"v_mul_f32 v{jA+q}, s{sScale}, v{jA+q}")
        for r in range(4):
            o(f"""v_cvt_pk_bf16_f32 v{jX+r}, v{jA+r}, v{jA+4+r}
            v_perm_b32 v{jX+4+r}, v{jA+4+r}, v{jX+r}, s3""")

    o(f"""s_cmp_ge_u32 s{sWave}, 8
    s_cbranch_scc1 L_join
    s_waitcnt vmcnt(0)
    s_branch L_jobdone
    L_join:""")
    job()
    for r in range(4):
        o(f"buffer_store_dword v{jX+4+r}, v{vJ+2}, {sr(ATS,4)}, s{sJg} offen offset:{r*128} sc1")
    o(f"""L_jobdone:
    v_lshlrev_b32 v18, 3, v0
    v_add_u32 v18, {L_SORT}, v18
    v_mul_u32_u24 v19, 12, v0
    s_mul_i32 s{sRec}, s2, {RECB}
    s_add_u32 s{sRec}, s{sRec}, {WS_REC}
    s_add_u32 s4, s{sRec}, 12288
    s_add_u32 s5, s{sRec}, 24576
    s_cmp_lg_u32 s{sWave}, 0
    s_waitcnt vmcnt(4) lgkmcnt(0)
    s_barrier""")
    st()
    vOut = 32
    for k in range(3):
        o(f"ds_read_b64 {vr(vOut+4*k+2,2)}, v18 offset:{8192*k}")
    for k in range(3):
        o(f"s_waitcnt lgkmcnt(2)\nds_read_b64 {vr(vOut+4*k,2)}, v{vOut+4*k+3}")
    for k, s in enumerate((sRec, 4, 5)):
        o(f"""s_waitcnt lgkmcnt({2-k})
        buffer_store_dwordx3 {vr(vOut+4*k,3)}, v19, {sr(WS,4)}, s{s} offen sc1""")
    o(f"""s_cbranch_scc1 L_notail
    ds_read_b64 {vr(vOut+14,2)}, v18 offset:24576
    s_add_u32 s5, s{sRec}, 36864
    s_waitcnt lgkmcnt(0)
    ds_read_b64 {vr(vOut+12,2)}, v{vOut+15}
    s_waitcnt lgkmcnt(0)
    buffer_store_dwordx3 {vr(vOut+12,3)}, v19, {sr(WS,4)}, s5 offen sc1
    L_notail:
    s_cmp_ge_u32 s{sWave}, 8
    s_cbranch_scc1 L_nobt""")
    job()
    for r in range(4):
        o(f"buffer_store_dword v{jX+4+r}, v{vJ+2}, {sr(ATS,4)}, s{sJg} offen offset:{r*128}{' sc1' if OPT['bsc'] else ''}")
    o(f"""v_add_u32 v{vJ+3}, s{sJb}, v{vJ+3}
    s_cmp_lt_u32 s{sWave}, 6
    s_cselect_b64 exec, -1, 0xffff""")
    for r in range(4):
        o(f"""ds_write_b16 v{vJ+3}, v{jX+r} offset:{512 + r*RS}
        ds_write_b16_d16_hi v{vJ+3}, v{jX+r} offset:{576 + r*RS}""")
        if r == 0:
            o("s_cbranch_scc0 L_btdone")
    o(f"""L_btdone:
    s_mov_b64 exec, -1
    s_branch L_now3
    L_nobt:
    s_cmp_lg_u32 s{sWave}, 8
    s_cbranch_scc1 L_now3
    v_lshrrev_b32 v8, 4, v2
    v_bfe_u32 v9, v2, 2, 1
    v_bfe_u32 v10, v2, 3, 1
    v_lshl_add_u32 v9, v9, 1, v10
    v_lshrrev_b32 v10, 5, v2
    v_xor_b32 v9, v9, v10
    v_and_b32 v10, 3, v2
    v_lshl_add_u32 v9, v9, 2, v10
    v_lshl_add_u32 v9, v8, 4, v9
    s_mov_b32 s4, {L_W12 + 128*128}
    v_lshl_add_u32 v9, v9, 3, s4
    ds_read_b64 v[12:13], v9
    v_lshlrev_b32 v8, 6, v8
    v_lshl_add_u32 v8, v2, 3, v8
    s_mov_b32 s4, {NLOG2E}
    s_waitcnt lgkmcnt(0)""")
    for i in range(2):
        o(f"""v_lshlrev_b32 v14, 16, v{12+i}
        v_and_b32 v15, 0xffff0000, v{12+i}
        v_mul_f32 v14, s4, v14
        v_mul_f32 v15, s4, v15
        v_cvt_pk_bf16_f32 v{12+i}, v14, v15""")
    o(f"ds_write_b64 v8, v[12:13] offset:{L_W3T}\nL_now3:")
    vWb, vTa = 89, 90
    o(f"""v_mov_b32 v11, 0
    ds_read_b32 v10, v11 offset:{L_TAG}
    s_cmp_lg_u32 s{sWave}, 0
    s_waitcnt lgkmcnt(0)
    v_readfirstlane_b32 s{sTag}, v10
    s_cbranch_scc1 L_notabw""")
    for i in range(4):
        o(f"v_mov_b32 v{9+2*i}, v10")
    for i in range(4):
        o(f"v_lshl_or_b32 v{8+2*i}, v{vC+i}, 16, v{vO+i}")
    o(f"""v_and_b32 v16, 7, v2
    v_lshlrev_b32 v16, 5, v16
    v_lshrrev_b32 v17, 3, v2
    v_lshl_add_u32 v16, v17, 16, v16
    L_notabw:""")
    st()
    o(f"ds_read_b128 {vr(cT,4)}, v{vCon}")
    o("v_lshrrev_b32 v17, 2, v0")
    o(f"""s_mov_b32 s5, {RECB}
    v_mul_lo_u32 v{vWb}, v17, s5
    v_lshlrev_b32 v{vTa}, 8, v17
    v_and_b32 v91, 15, v2
    v_lshlrev_b32 v18, 4, v0
    s_lshl_b32 s4, s2, 8
    s_add_u32 s4, s4, {WS_TAB}
    s_and_b32 s{sT0}, s2, 7
    s_lshl_b32 s{sT0}, s{sT0}, 16
    s_andn2_b32 s3, s2, 7
    s_add_u32 s{sT0}, s{sT0}, s3
    s_add_u32 s{sT0}, s{sT0}, {WS_TAB}
    s_mov_b32 s{sT1}, 0xf000f000
    s_mov_b32 s5, {WS_REC}
    s_cmp_lg_u32 s{sWave}, 0
    s_waitcnt vmcnt(0) lgkmcnt(0)
    s_barrier
    s_cbranch_scc1 L_notab
    buffer_store_dwordx4 v[8:11], v16, {sr(WS,4)}, s4 offen sc1
    buffer_store_dwordx4 v[12:15], v16, {sr(WS,4)}, s4 offen offset:16 sc1
    L_notab:
    buffer_load_dwordx4 {vr(vWU,4)}, v18, {sr(WU,4)}, 0 offen""")

    def tpf(lo, n, v):
        o(f"""s_lshr_b32 s3, s2, 3
        s_lshl_b32 s3, s3, 4
        s_add_u32 s3, s3, s{sWave}
        s_mul_i32 s3, s3, {NPB}
        s_lshr_b32 s3, s3, 1
        s_lshl_b32 s3, s3, 7
        s_add_u32 s3, s3, {WS_AT + lo*128}
        v_lshlrev_b32 v{v}, 7, v2
        s_mov_b64 exec, {hex((1 << n) - 1)}
        buffer_load_dword v{v}, v{v}, {sr(WS,4)}, s3 offen sc1
        s_mov_b64 exec, -1""")
    if OPT["pfn"]:
        tpf(0, OPT["pfn"], 94)
    st()
    o(f"""s_cmp_ge_u32 s{sWave}, 13
    s_cbranch_scc1 L_nofill
    v_lshrrev_b32 v28, 4, v0
    v_cmp_gt_u32 vcc, 50, v28
    v_mul_u32_u24 v28, {RS}, v28
    v_lshl_add_u32 v28, v91, 5, v28
    v_mov_b32 v32, 0
    v_mov_b32 v33, 0
    v_mov_b32 v34, 0
    v_mov_b32 v35, 0
    s_mov_b64 exec, vcc
    ds_write_b128 v28, v[32:35]
    ds_write_b128 v28, v[32:35] offset:16
    v_cmp_gt_u32 vcc, {DD//4}, v0
    v_mov_b32 v38, {L_LOFF + 49*LSTR}
    v_mov_b32 v39, {49*RS}
    v_add_u32 v37, {L_DL}, v30
    s_mov_b64 exec, vcc
    ds_write2st64_b32 v37, v38, v39 offset0:0 offset1:{DD//256}
    s_mov_b64 exec, -1
    s_branch L_filled
    L_nofill:
    s_cmp_lg_u32 s{sWave}, 15
    s_cbranch_scc1 L_filled
    v_lshlrev_b32 v8, 2, v2
    v_add_u32 v8, {L_LOFF + 49*LSTR}, v8
    v_mov_b32 v9, {(NROW-1)*4}
    v_mov_b32 v10, {L_EAZ}
    ds_write2st64_b32 v8, v9, v10 offset0:0 offset1:{LD//256}
    L_filled:
    s_mov_b32 s3, 0x100000""")
    vTab = 92
    o("L_poll:")
    o(f"""buffer_load_dwordx2 {vr(vTab,2)}, v{vTa}, {sr(WS,4)}, s{sT0} offen sc1
    s_waitcnt vmcnt(0)
    v_xor_b32 v24, s{sTag}, v{vTab+1}
    v_and_or_b32 v24, v{vTab}, s{sT1}, v24
    v_cmp_ne_u32 vcc, 0, v24
    s_and_b64 exec, exec, vcc
    s_cbranch_scc0 L_polled""")
    if OPT["sleep"]:
        o(f"s_sleep {OPT['sleep']}")
    o(f"""s_sub_u32 s3, s3, 1
    s_cbranch_scc0 L_poll
    v_mov_b32 v24, 0
    v_mov_b32 v25, 8
    ds_or_b32 v24, v25 offset:{L_FLAG}
    s_endpgm
    L_polled:
    s_mov_b64 exec, -1""")
    st()
    vRec, vGa, vRem = 24, 8, 12
    o(f"""v_and_b32 v{vTab+1}, 0xffff, v{vTab}
    v_lshrrev_b32 v{vTab}, 16, v{vTab}
    v_mad_u32_u24 v{vTab+1}, v{vTab+1}, 12, v{vWb}
    v_cmp_lt_u32 {sr(sBad,2)}, 32, v{vTab}""")
    for it in range(4):
        o(f"v_sub_u32_dpp v{vRem+it}, v{vTab}, v91 row_newbcast:{4*it} row_mask:0xf bank_mask:0xf")
    for it in range(4):
        o(f"""v_add_u32_dpp v{vGa+it}, v{vTab+1}, v7 row_newbcast:{4*it} row_mask:0xf bank_mask:0xf
        v_cmp_lt_i32 {sr(sMask+8+2*it,2)}, 16, v{vRem+it}
        v_cmp_lt_i32 {sr(sMask+2*it,2)}, 0, v{vRem+it}""")
    for it in range(4):
        o(f"""s_mov_b64 exec, {sr(sMask+8+2*it,2)}
        s_cbranch_execz L_nl{it}
        buffer_load_dwordx3 {vr(vRec+16+4*it,3)}, v{vGa+it}, {sr(WS,4)}, s5 offen offset:192
        L_nl{it}:""")
    for it in range(4):
        o(f"""s_mov_b64 exec, {sr(sMask+2*it,2)}
        buffer_load_dwordx3 {vr(vRec+4*it,3)}, v{vGa+it}, {sr(WS,4)}, s5 offen""")
    vIni, vNa = AX + 2, AX + 3
    o(f"""s_mov_b64 exec, -1
    ds_read_b128 {vr(vH,4)}, v{vCon} offset:2048
    ds_read_b128 {vr(AX,4)}, v{vCon} offset:1024
    s_mul_i32 s{sRun}, s{sWave}, {SLOTS*8}
    s_add_u32 s{sRun}, s{sRun}, {L_EA2}
    v_lshl_add_u32 v{vRec+3}, v2, 3, s{sRun}""")
    for it in range(1, 4):
        o(f"v_add_u32 v{vRec+4*it+3}, {512*it}, v{vRec+3}")
    o(f"s_lshr_b32 s{sRun}, s{sRun}, 3\ns_add_u32 s{sRun}, s{sRun}, 256\ns_add_u32 s5, s{sRun}, {SLOTS-256}")
    for it in range(4):
        m, w = sMask + 8 + 2 * it, vRec + 16 + 4 * it
        o(f"""s_bcnt1_i32_b64 s4, {sr(m,2)}
        s_cbranch_scc0 L_ns{it}
        v_mbcnt_lo_u32_b32 v{w+3}, s{m}, 0
        v_mbcnt_hi_u32_b32 v{w+3}, s{m+1}, v{w+3}
        v_add_lshl_u32 v{w+3}, v{w+3}, s{sRun}, 3
        s_add_u32 s{sRun}, s{sRun}, s4
        L_ns{it}:""")
    o(f"""s_mov_b32 s{sSelE}, 0x05040100
    s_mov_b32 s{sSelO}, 0x07060302
    v_lshrrev_b32 v16, 3, v0
    v_lshlrev_b32 v16, 7, v16
    v_and_b32 v17, 7, v0
    v_lshl_add_u32 v16, v17, 3, v16
    v_perm_b32 v8, v{vWU+1}, v{vWU}, s{sSelE}
    v_perm_b32 v9, v{vWU+3}, v{vWU+2}, s{sSelE}
    v_perm_b32 v10, v{vWU+1}, v{vWU}, s{sSelO}
    v_perm_b32 v11, v{vWU+3}, v{vWU+2}, s{sSelO}
    ds_write_b64 v16, v[8:9] offset:{L_WU}
    ds_write_b64 v16, v[10:11] offset:{L_WU+64}
    s_cmp_gt_u32 s{sRun}, s5
    s_cselect_b32 s4, 1, 0
    s_or_b32 s4, s4, s{sBad}
    s_or_b32 s4, s4, s{sBad+1}
    v_mov_b32 v19, 0
    v_mov_b32 v20, 4
    s_cbranch_scc0 L_ok1
    ds_or_b32 v19, v20 offset:{L_FLAG}
    s_mov_b64 {sr(sMask+8,2)}, 0
    s_mov_b64 {sr(sMask+10,2)}, 0
    s_mov_b64 {sr(sMask+12,2)}, 0
    s_mov_b64 {sr(sMask+14,2)}, 0
    L_ok1:
    v_lshlrev_b32 v18, 2, v2
    v_mov_b32 v{CK}, 0""")
    o(f"""s_lshl_b32 s4, s{sWave}, 4
    s_lshl_b32 s5, s{sWave}, 6
    s_add_u32 s{sT0}, s{sWave}, {L_DL//4}
    s_waitcnt lgkmcnt(0)
    v_add_u32 v{pH}, s4, v{pH}
    v_add_u32 v{pG}, s4, v{pG}
    v_add_u32 v{pR}, s4, v{pR}
    v_add_u32 v22, s5, v{vIni}
    v_subrev_u32 v{vIni}, 28, v{vIni}
    s_mul_i32 s4, s{sB}, {NPB}
    s_add_u32 s4, s4, {NROW}
    v_add_lshl_u32 v16, v2, s4, 2
    v_mov_b32 v17, {L_EAZ}
    s_lshl_b32 s{sT1}, s{sWave}, 2
    s_sub_u32 s{sT1}, s{sT1}, 36
    s_sub_u32 s{sRun}, 28, s{sT1}""")
    vRank = 8
    for r in range(8):
        w = vRec + 4 * r
        o(f"s_mov_b64 exec, {sr(sMask+2*r,2)}")
        o(f"s_waitcnt vmcnt({3-r})" if r < 4 else f"s_cbranch_execz L_np{r}")
        o(f"""v_lshrrev_b32 v21, 16, v{w+2}
        ds_add_rtn_u32 v{vRank+r}, v21, v20 offset:{L_HIST2}
        ds_write_b64 v{w+3}, {vr(w,2)}
        v_and_b32 v{w+2}, 0xffff, v{w+2}""")
        if r >= 4:
            o(f"L_np{r}:")
    o("s_waitcnt lgkmcnt(0)")
    for r in range(8):
        w = vRec + 4 * r
        o(f"s_mov_b64 exec, {sr(sMask+2*r,2)}")
        if r >= 4:
            o(f"s_cbranch_execz L_nq{r}")
        o(f"ds_write2st64_b32 v{vRank+r}, v{w+2}, v{w+3} offset0:0 offset1:{LD//256}")
        if r >= 4:
            o(f"L_nq{r}:")
    o(f"""s_mov_b64 exec, -1
    s_waitcnt lgkmcnt(0)
    s_barrier""")
    st()
    sND, sNS, sM = 56, 57, 58
    o(f"""ds_read_b32 v11, v18 offset:{L_HIST2}
    ds_read_b32 v9, v19 offset:{L_FLAG}
    s_movk_i32 s5, {128*4+28}
    s_cmp_gt_u32 s{sWave}, 8
    s_waitcnt lgkmcnt(0)
    v_sub_u32 v12, v11, v{vIni}
    v_readfirstlane_b32 s4, v9
    v_cmp_lt_u32 {sr(sBad,2)}, s5, v12
    s_cbranch_scc1 L_dpad
    v_lshrrev_b32 v8, 6, v12
    v_bfe_u32 v13, v12, 5, 1
    v_lshl_or_b32 v14, v13, 16, v8
    v_mov_b32 v10, v14
    s_or_b32 s5, s{sBad}, s{sBad+1}
    s_or_b32 s5, s4, s5
    s_cbranch_scc1 L_slow""")
    dpp_scan(o, 10)
    o(f"""s_cmp_eq_u32 s{sWave}, 8
    s_cbranch_scc1 L_dsingle
    v_cmp_lt_u32 vcc, s{sWave}, v8
    v_sub_u32 v10, v10, v14
    v_and_b32 v10, 0xffff, v10
    v_add_lshl_u32 v10, v10, s{sT0}, 2
    s_mov_b64 exec, vcc
    ds_write2st64_b32 v10, v22, v{vNa} offset0:0 offset1:{DD//256}
    s_branch L_ddone
    L_dpad:
    v_and_b32 v12, 31, v12
    v_add_u32 v11, s{sT1}, v11
    v_cmp_gt_i32 vcc, s{sRun}, v12
    s_or_b32 s5, s{sBad}, s{sBad+1}
    s_or_b32 s5, s4, s5
    s_cbranch_scc1 L_slow
    s_mov_b64 exec, vcc
    ds_write2st64_b32 v11, v16, v17 offset0:0 offset1:{LD//256}
    s_branch L_ddone
    L_dsingle:
    v_readlane_b32 s{sNS}, v10, 63
    v_sub_u32 v10, v10, v14
    v_lshl_add_u32 v15, v8, 6, v{vIni}
    v_add_u32 v15, 28, v15
    s_add_u32 s{sNS}, s{sNS}, 0x30003
    s_bfe_u32 s{sND}, s{sNS}, 0xe0002
    s_sub_u32 s{sM}, 0, s{sND}
    s_and_b32 s{sM}, s{sM}, 3
    v_lshrrev_b32 v11, 18, v10
    s_sub_u32 s4, 4, s{sM}
    v_cmp_gt_u32 vcc, s{sM}, v11
    v_add_u32 v12, s4, v11
    v_bfe_u32 v10, v10, 16, 2
    v_cndmask_b32 v11, v12, v11, vcc
    v_cmp_eq_u32 vcc, 1, v13
    v_and_b32 v11, 15, v11
    s_add_u32 s4, s{sND}, {L_DL//16}
    v_add_lshl_u32 v11, v11, s4, 2
    v_add_lshl_u32 v10, v10, v11, 2
    v_mov_b32 v11, s{sNS}
    ds_write_b32 v19, v11 offset:{L_TOT}
    s_mov_b64 exec, vcc
    ds_write2st64_b32 v10, v15, v{vNa} offset0:0 offset1:{DD//256}
    L_ddone:
    s_mov_b64 exec, -1
    s_waitcnt lgkmcnt(0)
    s_barrier""")
    st()

    def PF(d, a, b, c):
        return f"v_pk_fma_f32 {vr(d,2)}, {vr(a,2)}, {vr(b,2)}, {vr(c,2)}"

    def chain(Y, Nc, Dc, start, fin):
        if start:
            r = [f"v_pk_add_f32 {vr(Ta,2)}, {vr(T,2)}, 1.0 op_sel_hi:[1,0]", PF(Nc, Y, T + 2, Y)]
        else:
            r = [PF(Nc, Nc, T, Nc), PF(Ta, Dc, T, Dc), PF(Nc, Y, Dc, Nc), PF(Nc, Nc, T + 2, Nc)]
        cur = Ta
        for i in range(1, 8):
            nxt = Dc if i == 7 else (Tb if cur == Ta else Ta)
            if i > 1:
                r += [PF(Nc, Nc, T + 2 * i, Nc)]
            r += [PF(nxt, cur, T + 2 * i, cur), PF(Nc, Y + 2 * i, cur, Nc)]
            cur = nxt
        if fin:
            r += [f"v_rcp_f32 v{Tb}, v{Dc}", f"v_rcp_f32 v{Tb+1}, v{Dc+1}", f"v_max3_f32 v{CK}, v{Dc}, v{Dc+1}, v{CK}",
                  f"v_pk_mul_f32 {vr(Tb,2)}, {vr(Nc,2)}, {vr(Tb,2)}",
                  f"v_cvt_f64_f32 {vr(R0,2)}, v{Tb}", f"v_cvt_f64_f32 {vr(R1,2)}, v{Tb+1}"]
        return r

    def exps(Y):
        return [f"v_exp_f32 v{T+i}, v{Y+i}" for i in range(16)]

    def flush(off):
        return [f"ds_add_f64 v{FA}, {vr(R0,2)} offset:{off}", f"ds_add_f64 v{FA+1}, {vr(R1,2)} offset:{off}"]

    def loads(x, par, of=OF):
        r = [f"v_and_b32 v{of+j}, 0x1fffc, v{of+j}" for j in range(8)] if OPT["safe"] else []
        return r + [f"buffer_load_dword v{x+2*j+par}, v{of+j}, {sr(AT,4)}, 0 offen" for j in range(8)]

    def ofr(la, off=0, of=OF):
        return [f"ds_read_b128 {vr(of,4)}, v{la} offset:{off}", f"ds_read_b128 {vr(of+4,4)}, v{la} offset:{off+16}"]

    ear = ["s_mov_b32 exec_hi, 0", f"ds_read_b64 {vr(AX,2)}, v{SL}", "s_mov_b32 exec_hi, -1"]
    trr = [f"ds_read_b64_tr_b16 {vr(BE,2)}, v{DR} offset:512", f"ds_read_b64_tr_b16 {vr(BO,2)}, v{DR} offset:576"]
    drm = f"v_mad_u32_u24 v{DR}, v{DR}, v{vH}, v{cT}"
    faa = [f"v_add_u32 v{FA}, v{FA}, v{cC}", f"v_add_u32 v{FA+1}, v{FA+1}, v{cC}"]

    def shifts(z, x):
        return [f"v_lshlrev_b64 {vr(z+2*i,2)}, 16, {vr(x+2*i,2)}" for i in range(8)]

    def m8(d, b):
        return f"v_mfma_f32_32x32x8_bf16 {vr(d,16)}, {vr(AX,2)}, {vr(b,2)}, {vr(d,16)}"

    if OPT["prio"]:
        o("s_setprio 1")
    o(f"""ds_read_b32 v{Ta}, v19 offset:{L_TOT}
    ds_read_b64 {vr(NX,2)}, v{pH}
    ds_read_b32 v{LG}, v{pG}
    ds_read_b32 v{DR}, v{pR} offset:{DD}
    ds_read_b64 {vr(LA,2)}, v{pH} offset:256
    s_waitcnt lgkmcnt(2)
    v_add_u32 v{LG}, v{LG}, v{cJ}""")
    o(ofr(NX, 0, T) + ofr(NX + 1, 0, T + 8) + [f"ds_read_b32 v{SL}, v{LG} offset:{LD}"])
    o(ofr(NX, 32, ZA[1]) + ofr(NX + 1, 32, OF))
    o(f"""v_readfirstlane_b32 s{sNS}, v{Ta}
    s_bfe_u32 s{sND}, s{sNS}, 0xe0002
    s_lshr_b32 s{sNS}, s{sNS}, 18
    s_sub_u32 s{sM}, 0, s{sND}
    s_and_b32 s{sM}, s{sM}, 3
    s_add_u32 s{sK}, s{sND}, 15
    s_sub_u32 s{sK}, s{sK}, s{sWave}
    s_lshr_b32 s{sK}, s{sK}, 4
    s_lshl_b32 s{sK}, s{sK}, 1
    s_sub_u32 s4, s{sWave}, s{sND}
    s_and_b32 s4, s4, 15
    s_add_u32 s5, s4, 12
    s_and_b32 s5, s5, 15
    s_add_u32 s5, s5, s{sM}
    s_cmp_lt_u32 s4, s{sM}
    s_cselect_b32 s5, s4, s5
    s_cmp_lt_u32 s5, s{sNS}
    s_addc_u32 s{sK}, s{sK}, 0
    s_cmp_eq_u32 s{sK}, 0
    s_cbranch_scc1 L_post""")
    o(["s_waitcnt lgkmcnt(4)", drm])
    o(loads(XA[0], 0, T) + loads(XA[0], 1, T + 8) + ear + trr)
    o(f"""ds_read_b32 v{SL}, v{LG} offset:{LD+32}
    ds_read_b32 v{LG}, v{pG} offset:256
    s_cmp_lt_u32 s{sK}, 2
    s_cbranch_scc1 L_pro1
    s_waitcnt lgkmcnt(7)""")
    o(loads(XA[1], 0, ZA[1]))
    o(f"s_waitcnt vmcnt(8)\ns_branch L_pro2\nL_pro1:\ns_waitcnt vmcnt(0)\nL_pro2:")
    o(shifts(ZA[0], XA[0]) + ["s_waitcnt lgkmcnt(2)", m8(XA[0], BO)])
    o([f"v_mov_b32 v{R0+i}, 0" for i in range(4)] + [f"v_mov_b32 v{FA}, v{cC}", f"v_mov_b32 v{FA+1}, v{cC}", m8(ZA[0], BE), "s_nop 4"])
    st()
    za, zb = OPT["za"], OPT["zb"]
    o("s_cbranch_scc1 L_single\n.p2align 6\nL_loop:")
    for u in range(2):
        xc, xn, zc, zn = XA[u], XA[1 - u], ZA[u], ZA[1 - u]
        eX, eZ = exps(xc), exps(zc)
        o(eX[:za])
        if u == 0:
            o(["s_waitcnt lgkmcnt(0)"] + flush(0) + ear + loads(xn, 1) + ofr(LA))
        else:
            o(["s_waitcnt lgkmcnt(0)", drm, f"ds_read_b64 {vr(FA,2)}, v{pH} offset:{DD}",
               f"s_cmp_lt_u32 s{sK}, 3", "s_cbranch_scc1 L_a1"] + ear + trr + loads(xn, 1) + ofr(LA, 32) + ["L_a1:"])
        o(eX[za:])
        o(chain(xc, NX, DX, u == 0, u == 1))
        o("s_waitcnt vmcnt(0) lgkmcnt(0)")
        if u == 1:
            o("s_cbranch_scc1 L_last1")
        o(shifts(zn, xn) + [m8(xn, BO)] + eZ[:4] + [m8(zn, BE)] + eZ[4:zb-2])
        o(([f"v_add_u32 v{LG}, v{LG}, v{cJ}"] if u == 0 else faa) + eZ[zb-2:zb])
        if u == 1:
            o(flush(256))
        o(f"s_cmp_lt_u32 s{sK}, {3+u}\ns_cbranch_scc1 L_c{u}")
        o(loads(xc, 0))
        if OPT["prio"]:
            o(f"s_branch L_d{u}\nL_c{u}:\ns_setprio 0\nL_d{u}:")
        else:
            o(f"L_c{u}:")
        o(ofr(LA + 1, 32 * u) + [f"ds_read_b32 v{SL}, v{LG} offset:{LD + 32*u}"])
        if u == 0:
            o(f"ds_read_b32 v{DR}, v{pR} offset:{DD+256}")
        else:
            o(f"""ds_read_b64 {vr(LA,2)}, v{pH} offset:512
            ds_read_b32 v{LG}, v{pG} offset:512
            s_sub_u32 s{sK}, s{sK}, 2""")
            o(f"s_cmp_gt_u32 s{sK}, 1")
        o(eZ[zb:])
        if u == 1:
            o([f"v_add_u32 v{p}, 0x100, v{p}" for p in (pH, pG, pR)])
        o(chain(zc, NZ, DZ, u == 0, u == 1))
    o("s_cbranch_scc1 L_loop")
    eX, eZ = exps(XA[0]), exps(ZA[0])
    o("L_single:")
    if OPT["prio"]:
        o("s_setprio 0")
    o(eX[:4] + flush(0) + [f"ds_read_b64 {vr(FA,2)}, v{pH} offset:{DD}"] + eX[4:] + chain(XA[0], NX, DX, True, True))
    o(["s_waitcnt lgkmcnt(0)"] + faa + flush(256) + eZ + chain(ZA[0], NZ, DZ, True, True) + ["s_branch L_done"])
    o("L_last1:")
    o(faa + flush(256) + exps(ZA[1]) + chain(ZA[1], NZ, DZ, False, True))
    o("L_done:")
    o(flush(0))
    o(f"""s_mov_b32 s4, {f32(2.0**120)}
    v_cmp_ngt_f32 vcc, s4, v{CK}
    v_mov_b32 v{Ta}, 0
    v_mov_b32 v{Ta+1}, 4
    s_mov_b64 exec, vcc
    ds_or_b32 v{Ta}, v{Ta+1} offset:{L_FLAG}
    s_mov_b64 exec, -1""")
    eX_, eW, eA, eAcc, eAg, eG = 8, 16, 48, 56, 64, 72
    o("L_post:")
    st()
    o(f"""s_or_b32 s4, s2, s{sWave}
    s_cbranch_scc1 L_nox
    v_mov_b32 v8, 0
    v_mov_b32 v9, s{sTag}
    s_mov_b64 exec, 1
    buffer_store_dword v9, v8, {sr(WS,4)}, 0 offen sc1
    s_mov_b64 exec, -1
    L_nox:
    s_cmp_ge_u32 s{sWave}, 8
    s_cbranch_scc1 L_ewait
    ds_read_b128 v[104:107], v{vCon} offset:3072
    ds_read_b128 v[108:111], v{vCon} offset:4096
    s_lshr_b32 s4, s{sWave}, 1
    s_and_b32 s5, s{sWave}, 1
    s_lshl_b32 s5, s5, 5
    s_lshl_b32 s{sT0}, s4, 11
    s_mul_i32 s{sT1}, s4, {16*RS}
    s_lshl_b32 s3, s5, 1
    s_add_u32 s3, s3, s{sXo}
    s_add_u32 s3, s3, s{sT0}
    s_waitcnt lgkmcnt(0)
    v_add_u32 v104, s{sT0}, v104
    v_add_u32 v108, s5, v108
    v_add_u32 v109, s5, v109
    v_xor_b32 v105, 64, v104
    ds_read_b128 {vr(eX_,4)}, v104 offset:{L_XT}
    ds_read_b128 {vr(eX_+4,4)}, v105 offset:{L_XT}""")
    for t in range(2):
        for s in range(2):
            for u in range(2):
                o(f"ds_read_b64_tr_b16 {vr(eW + 16*t + 4*s + 2*u, 2)}, v108 offset:{L_WU + s*4096 + u*512 + t*64}")
    o(f"""v_add_u32 v111, s{sT1}, v110
    s_cmp_lt_u32 s{sWave}, 6
    s_cselect_b64 {sr(56,2)}, -1, 0xffff
    s_cselect_b64 {sr(58,2)}, -1, 0
    s_waitcnt lgkmcnt(0)""")
    for t in range(2):
        for s in range(2):
            for u in range(2):
                o(f"ds_read_b64_tr_b16 {vr(eW + 16*t + 8 + 4*s + 2*u, 2)}, v109 offset:{L_WU + (64+16*s)*128 + u*4096 + t*64}")
    for t in range(2):
        for s in range(2):
            o(mfma16(eAcc + 4 * t, eX_ + 4 * s, eW + 16 * t + 4 * s, "0" if s == 0 else None))
    o(f"s_mov_b32 s4, {NLOG2E}\ns_mov_b32 s5, s4\ns_nop 5")
    for i in range(8):
        o(f"v_mul_f32 v{eAcc+i}, s4, v{eAcc+i}")
    o("s_waitcnt lgkmcnt(0)\ns_barrier")
    st()
    for s in range(2):
        for u in range(4):
            o(f"ds_read_b128 {vr(eG + 16*s + 4*u, 4)}, v111 offset:{s*256 + u*64}")
    for s in range(2):
        for u in range(4):
            g = eG + 16 * s + 4 * u
            o(f"""s_waitcnt lgkmcnt({7 - 4*s - u})
            v_cvt_f32_f64 v{g}, {vr(g,2)}
            v_cvt_f32_f64 v{g+2}, {vr(g+2,2)}
            v_cvt_pk_bf16_f32 v{eA+4*s+u}, v{g}, v{g+2}""")
    for s in range(2):
        for t in range(2):
            o(mfma16(eAcc + 4 * t, eA + 4 * s, eW + 16 * t + 8 + 4 * s))
    o("s_nop 7")
    for i in range(8):
        o(f"v_exp_f32 v{eG+i}, v{eAcc+i}")
    for i in range(4):
        o(f"v_pk_fma_f32 {vr(eG+2*i,2)}, {vr(eG+2*i,2)}, s[4:5], s[4:5]")
    for i in range(8):
        o(f"v_rcp_f32 v{eG+i}, v{eG+i}")
    for i in range(4):
        o(f"v_pk_mul_f32 {vr(eG+2*i,2)}, {vr(eG+2*i,2)}, {vr(eAcc+2*i,2)}")
    for r in range(4):
        o(f"""v_cvt_pk_bf16_f32 v{eA+r}, v{eG+r}, v{eG+4+r}
        buffer_store_dword v{eA+r}, v106, {sr(OUT,4)}, s3 offen offset:{r*128}{(' sc1', ' nt', ' sc0 sc1')[OPT['outsc']-1] if OPT['outsc'] else ''}""")
    o(f"s_movk_i32 s4, 0x207\nv_mov_b32 v8, 0\nv_mov_b32 v9, 4")
    for r in range(4):
        o(f"""v_cmp_class_f32 vcc, v{eAcc+r}, s4
        s_and_b64 exec, vcc, {sr(58 if r else 56,2)}
        ds_or_b32 v8, v9 offset:{L_FLAG}
        s_mov_b64 exec, -1""")
    o(f"""s_branch L_chk
    L_ewait:
    s_waitcnt lgkmcnt(0)
    s_barrier""")
    if OPT["stamp"]:
        o(f"s_memrealtime {sr(STAMP0 + 2 * (nst[0] - 1), 2)}")
    o(f"""v_mov_b32 v8, 0
    L_chk:
    s_waitcnt lgkmcnt(0)
    s_barrier
    ds_read_b32 v9, v8 offset:{L_FLAG}
    s_waitcnt lgkmcnt(0)
    v_readfirstlane_b32 s4, v9
    s_cmp_gt_u32 s4, s{sRedo}
    s_cbranch_scc1 L_slow""")
    if OPT["stamp"]:
        o(f"""s_waitcnt vmcnt(0)
        s_memrealtime s[4:5]
        s_lshl_b32 s3, s2, 4
        s_add_u32 s3, s3, s{sWave}
        s_lshl_b32 s3, s3, 6
        s_add_u32 s3, s3, {WS_STAMP}
        s_mov_b32 s{WS+2}, {WS_STAMP + (4 << 20)}
        v_mov_b32 v30, s3
        s_waitcnt lgkmcnt(0)""")
        for i in range(nst[0] + 1):
            sreg = STAMP0 + 2 * i if i < nst[0] else 4
            o(f"v_mov_b32 v31, s{sreg}\nbuffer_store_dword v31, v30, {sr(WS,4)}, 0 offen offset:{4*i}")
    o("L_end:\ns_endpgm")
    o(f"""L_slow:
    s_bitcmp1_b32 s4, 3
    s_cbranch_scc1 L_end
    s_mov_b32 s{sRedo}, 4
    s_setprio 0
    s_waitcnt vmcnt(0) lgkmcnt(0)
    s_barrier
    v_lshrrev_b32 v10, 4, v0
    v_cmp_gt_u32 vcc, 50, v10
    v_mul_u32_u24 v10, {RS}, v10
    v_and_b32 v12, 15, v0
    v_lshl_add_u32 v10, v12, 5, v10
    v_mov_b32 v12, 0
    v_mov_b32 v13, 0
    v_mov_b32 v14, 0
    v_mov_b32 v15, 0
    v_bfe_u32 v6, v2, 4, 1
    v_lshrrev_b32 v9, 5, v2
    v_lshl_add_u32 v6, v6, 1, v9
    v_and_b32 v7, 15, v2
    v_lshl_add_u32 v6, v6, 4, v7
    v_lshlrev_b32 v6, 1, v6
    s_movk_i32 s5, {128*128}
    s_mov_b64 exec, vcc
    ds_write_b128 v10, v[12:15]
    ds_write_b128 v10, v[12:15] offset:16
    s_mov_b64 exec, -1""")
    for k in range(4):
        o(f"buffer_load_ushort v{16+k}, v6, {sr(WM,4)}, s5 offen offset:{k*128}")
    o(f"s_mov_b32 s4, {NLOG2E}\ns_waitcnt vmcnt(0) lgkmcnt(0)\ns_barrier")
    for k in range(4):
        o(f"v_lshlrev_b32 v{16+k}, 16, v{16+k}\nv_mul_f32 v{16+k}, s4, v{16+k}")
    o(f"""v_and_b32 v6, 31, v2
    v_lshl_add_u32 v6, v6, 1, v9
    v_lshlrev_b32 v6, 1, v6
    v_lshlrev_b32 v7, 1, v2
    v_lshlrev_b32 v8, 3, v2
    s_mov_b32 s56, s{sWave}
    s_movk_i32 s61, {RS//4}
    s_mov_b32 s62, {WS_AT}
    L_sseg:
    s_and_b32 s57, s2, 7
    s_lshl_b32 s57, s57, 8
    s_add_u32 s57, s57, s56
    s_lshl_b32 s57, s57, 8
    s_andn2_b32 s58, s2, 7
    s_add_u32 s57, s57, s58
    s_add_u32 s57, s57, {WS_TAB}
    buffer_load_dword v20, v12, {sr(WS,4)}, s57 offen sc1
    s_waitcnt vmcnt(0)
    v_readfirstlane_b32 s58, v20
    s_lshr_b32 s59, s58, 16
    s_and_b32 s58, s58, 0xffff
    s_mul_i32 s58, s58, 12
    s_mul_i32 s60, s56, {RECB}
    s_add_u32 s58, s58, s60
    s_add_u32 s58, s58, {WS_REC}
    s_cmp_eq_u32 s59, 0
    s_cbranch_scc1 L_snext
    L_sedge:
    buffer_load_dwordx3 v[20:22], v12, {sr(WS,4)}, s58 offen
    s_waitcnt vmcnt(0)
    v_and_b32 v23, 0xffff, v22
    v_lshl_add_u32 v23, v23, 5, v6
    buffer_load_ushort v23, v23, {sr(WS,4)}, s62 offen
    v_lshrrev_b32 v22, 16, v22
    v_mad_u32_u24 v24, v22, s61, v7
    ds_read_u16 v25, v24 offset:512
    v_mad_u32_u24 v24, v22, s61, v8
    v_lshlrev_b32 v27, 16, v20
    v_and_b32 v20, 0xffff0000, v20
    v_lshlrev_b32 v28, 16, v21
    v_and_b32 v21, 0xffff0000, v21
    v_mul_f32 v27, v27, v16
    v_fmac_f32 v27, v20, v17
    v_fmac_f32 v27, v28, v18
    v_fmac_f32 v27, v21, v19
    s_waitcnt vmcnt(0) lgkmcnt(0)
    v_lshlrev_b32 v23, 16, v23
    v_lshlrev_b32 v25, 16, v25
    v_sub_f32 v27, v27, v25
    v_add_f32 v27, v27, v23
    v_exp_f32 v28, v27
    s_add_u32 s58, s58, 12
    v_add_f32 v28, 1.0, v28
    v_rcp_f32 v28, v28
    s_sub_u32 s59, s59, 1
    v_mul_f32 v28, v27, v28
    v_cvt_f64_f32 v[28:29], v28
    ds_add_f64 v24, v[28:29]
    s_cmp_lg_u32 s59, 0
    s_cbranch_scc1 L_sedge
    L_snext:
    s_add_u32 s56, s56, 16
    s_cmp_lt_u32 s56, 256
    s_cbranch_scc1 L_sseg
    s_branch L_post""")
    o(f"""L_loader:
    s_load_dword s{sTag}, {sr(WS,2)}, {WS_X}
    s_barrier
    s_cmp_lg_u32 s{sWave}, 15
    s_cbranch_scc1 L_ldw
    v_bfe_u32 v24, v2, 4, 2
    v_lshlrev_b32 v24, 4, v24
    v_xor_b32 v24, v24, v31
    v_xor_b32 v25, 64, v24""")
    for i in range(8):
        if i % 4 == 0:
            o(f"s_mov_b32 m0, {L_XT + 1024*i}\ns_add_u32 s4, s{sXo}, {1024*i}")
        o(f"buffer_load_dwordx4 v{24 + (i & 1)}, {sr(XS,4)}, s4 offen offset:{1024*(i%4)} lds")
    o(f"""s_branch L_lddone
    L_ldw:
    v_bfe_u32 v26, v2, 4, 1
    v_lshlrev_b32 v26, 5, v26
    v_xor_b32 v26, v26, v31
    v_xor_b32 v27, 64, v26
    s_sub_u32 s4, s{sWave}, 13
    s_lshl_b32 s4, s4, 13""")
    for i in range(9):
        if i % 4 == 0:
            o(f"s_add_u32 m0, s4, {L_W12 + 1024*i}\ns_add_u32 s5, s4, {1024*i}")
        o(f"buffer_load_dwordx4 v{26 + (i & 1)}, {sr(WM,4)}, s5 offen offset:{1024*(i%4)} lds")
    o("L_lddone:")
    restamp(1)
    o("s_barrier")
    restamp(2)
    o(jobrd)
    o(common)
    o(jobad)
    o(f"""    s_mul_i32 s{sTag}, s{sTag}, 0x9e3779b5
    s_add_u32 s{sTag}, s{sTag}, 0x7f4a7c15
    v_mov_b32 v28, s{sTag}
    ds_write_b32 v32, v28 offset:{L_TAG}
    s_waitcnt vmcnt(0)
    s_barrier""")
    restamp(3)
    o("s_branch L_join")
    return o


def main():
    k = gen()
    n = "standalone__mpnn_edge_mlp__graph_kernel"
    out = f"""; Fused MPNN edge MLP. Phase 1: every workgroup bins 3136 edges by destination bucket (49 nodes) and builds
; @launch grid=(256,1,1) block=(1024,1,1) lds={LDS}
.amdgcn_target "amdgcn-amd-amdhsa--gfx950"
.text
.globl {n}
.p2align 8
.type {n},@function
{n}:
{k.text()}.section .rodata,"a"
.p2align 6
.amdhsa_kernel {n}
  .amdhsa_next_free_vgpr 128
  .amdhsa_next_free_sgpr 102
  .amdhsa_accum_offset 128
  .amdhsa_group_segment_fixed_size 0
  .amdhsa_kernarg_size 72
  .amdhsa_user_sgpr_count 2
  .amdhsa_user_sgpr_kernarg_segment_ptr 1
  .amdhsa_system_sgpr_workgroup_id_x 1
.end_amdhsa_kernel
"""
    open(sys.argv[1], "w").write(out)


main()
```

```python
import sys
src, out, A, B = sys.argv[1:5]
REG = sys.argv[5] if len(sys.argv) > 5 else ""
s = open(src).read()
lines = s.split("\n")
L = [i for i, l in enumerate(lines) if l.startswith("; @launch")]
if "kernel=" not in lines[L[-1]]:
    lines[L[-1]] = lines[L[-1]].replace("@launch ", "@launch kernel=standalone__mpnn_edge_mlp__graph_kernel ")
lines.insert(L[-1] + 1, "; @launch kernel=diag_kernel grid=(1,1,1) block=(64,1,1) lds=0")
s = "\n".join(lines)
WS_STAMP = 32 << 20
o = ["s_cmp_lg_u32 s2, 0", "s_cbranch_scc1 LD_end", "s_load_dwordx2 s[8:9], s[0:1], 64", f"s_mov_b32 s10, {WS_STAMP + (4<<20)}", "s_mov_b32 s11, 0x20000",
     "v_lshlrev_b32 v1, 10, v0", "v_mov_b32 v2, 0", f"s_mov_b32 s4, {WS_STAMP}", "s_waitcnt lgkmcnt(0)",
     "buffer_load_dword v3, v2, s[8:11], s4 offen"]
def red(spec, v, sd):
    k, w, i, op = spec.split(",")
    r = []
    for q in range(4):
        r += [f"s_mov_b32 s4, {WS_STAMP + int(k)*(1<<20) + q*65536 + int(w)*64 + int(i)*4}", f"buffer_load_dword v{v+q}, v1, s[8:11], s4 offen"]
    r += ["s_waitcnt vmcnt(0)"]
    for q in range(4):
        r += [f"v_sub_u32 v{v+q}, v{v+q}, v3", f"v_add_u32 v{v+q}, 0x10000, v{v+q}"]
    ins = {"min": "v_min_u32", "max": "v_max_u32", "avg": "v_add_u32"}[op]
    r += [f"{ins} v{v}, v{v}, v{v+1}", f"{ins} v{v+2}, v{v+2}, v{v+3}", f"{ins} v{v}, v{v}, v{v+2}"]
    for m in ("row_shr:1 row_mask:0xf", "row_shr:2 row_mask:0xf", "row_shr:4 row_mask:0xf", "row_shr:8 row_mask:0xf", "row_bcast:15 row_mask:0xa", "row_bcast:31 row_mask:0xc"):
        r += ["s_nop 1", f"{ins}_dpp v{v}, v{v}, v{v} {m} bank_mask:0xf"]
    r += ["s_nop 1", f"v_readlane_b32 s{sd}, v{v}, 63", "s_nop 3"]
    r += [f"s_lshr_b32 s{sd}, s{sd}, 5" if op == "avg" else f"s_lshl_b32 s{sd}, s{sd}, 3"]
    return r
o += ["s_mov_b32 s12, 0", f"s_movk_i32 s13, {B if B.isdigit() else 2000}"] if A == "const" else red(A, 4, 12) + red(B, 8, 13)
if REG:
    o += [f"s_mov_b32 s4, {WS_STAMP + (3 << 20)}", "buffer_load_dword v12, v2, s[8:11], s4 offen sc1", "s_waitcnt vmcnt(0)", "v_readfirstlane_b32 s18, v12",
          "v_mov_b32 v12, 0x1badc0de", "buffer_store_dword v12, v2, s[8:11], s4 offen sc1", "s_cmp_eq_u32 s18, 0x1badc0de",
          "s_cbranch_scc1 LD_end" if REG == "C" else "s_cbranch_scc0 LD_end"]
o += ["s_sub_u32 s12, s13, s12", "s_max_i32 s12, s12, 0", "s_min_u32 s12, s12, 50000", "s_memrealtime s[14:15]", "s_waitcnt lgkmcnt(0)",
      "LD_spin:", "s_memrealtime s[16:17]", "s_waitcnt lgkmcnt(0)", "s_sub_u32 s16, s16, s14", "s_cmp_lt_u32 s16, s12", "s_cbranch_scc1 LD_spin", "LD_end:", "s_endpgm"]
s = s.replace('.section .rodata', '.globl diag_kernel\n.p2align 8\n.type diag_kernel,@function\ndiag_kernel:\n' + "\n".join(o) + '\n.section .rodata', 1)
s += '''.p2align 6
.amdhsa_kernel diag_kernel
  .amdhsa_next_free_vgpr 16
  .amdhsa_next_free_sgpr 32
  .amdhsa_accum_offset 16
  .amdhsa_group_segment_fixed_size 0
  .amdhsa_kernarg_size 72
  .amdhsa_user_sgpr_count 2
  .amdhsa_user_sgpr_kernarg_segment_ptr 1
  .amdhsa_system_sgpr_workgroup_id_x 1
.end_amdhsa_kernel
'''
open(out, "w").write(s)
```
